```python
import torch

def _softmax(x, axis=-1):
    return torch.softmax(x, dim=axis)
def _gelu(x):
    return torch.nn.functional.gelu(x, approximate="tanh")
def _silu(x):
    return torch.nn.functional.silu(x)
def _sigmoid(x):
    return torch.sigmoid(x)
def _layernorm(x, axis=-1, eps=1e-5):
    m = x.mean(dim=axis, keepdim=True)
    v = x.var(dim=axis, keepdim=True, unbiased=False)
    return (x - m) / torch.sqrt(v + eps)
def _scatter_add(tgt, idx, src, axis=0):
    return tgt.clone().index_add_(axis, idx, src)
def _segment_sum(src, seg, n):
    out = torch.zeros((n,) + src.shape[1:], dtype=src.dtype)
    return out.index_add_(0, seg, src)
def _pad(x, pw):
    flat = tuple(v for pair in reversed(pw) for v in pair)
    return torch.nn.functional.pad(x, flat)

kernel_name = 'concat_heads__sliding_block_cached__sliding_block_cached__decode'

def setup_inputs():

    _w = (lambda a: (lambda t: t.to(torch.bfloat16) if t.is_floating_point() else t)(torch.as_tensor(a)))
    def _A_setup():
        B, Sq, D = 1, 1, 640
        Hq, Hkv, Sk, Dh = 32, 32, 4096, 192
        assert Hq % Hkv == 0, (Hq, Hkv)
        return {
            "x": _w((lambda *s: torch.randn(*s, dtype=torch.bfloat16) * 1.6)(B, Sq, D)),
            "k_cache": _w((lambda *s: torch.randn(*s, dtype=torch.bfloat16) * 1.6)(B, Hkv, Sk, Dh)),
            "v_cache": _w((lambda *s: torch.randn(*s, dtype=torch.bfloat16) * 0.05)(B, Hkv, Sk, Dh)),
            "wq": _w((lambda *s: torch.randn(*s, dtype=torch.bfloat16) * 1.6)(D, Hq * Dh) * (D ** -0.5)),
            "wo": _w((lambda *s: torch.randn(*s, dtype=torch.bfloat16) * 0.05)(Hq * Dh, D) * ((Hq * Dh) ** -0.5)),
        }
    _A_in = _A_setup()

    def _B_setup():
        B, Sq, D = 1, 1, 640
        Hq, Hkv, Sk, Dh = 32, 32, 4096, 192
        assert Hq % Hkv == 0, (Hq, Hkv)
        return {
            "x": _w((lambda *s: torch.randn(*s, dtype=torch.bfloat16) * 1.6)(B, Sq, D)),
            "k_cache": _w((lambda *s: torch.randn(*s, dtype=torch.bfloat16) * 1.6)(B, Hkv, Sk, Dh)),
            "v_cache": _w((lambda *s: torch.randn(*s, dtype=torch.bfloat16) * 0.05)(B, Hkv, Sk, Dh)),
            "wq": _w((lambda *s: torch.randn(*s, dtype=torch.bfloat16) * 1.6)(D, Hq * Dh) * (D ** -0.5)),
            "wo": _w((lambda *s: torch.randn(*s, dtype=torch.bfloat16) * 0.05)(Hq * Dh, D) * ((Hq * Dh) ** -0.5)),
        }
    _B_in = _B_setup()

    return {
        "A_x": _A_in["x"],
        "A_k_cache": _A_in["k_cache"],
        "A_v_cache": _A_in["v_cache"],
        "A_wq": _A_in["wq"],
        "A_wo": _A_in["wo"],
        "B_x": _B_in["x"],
        "B_k_cache": _B_in["k_cache"],
        "B_v_cache": _B_in["v_cache"],
        "B_wq": _B_in["wq"],
        "B_wo": _B_in["wo"],
    }

def reference(A_x, A_k_cache, A_v_cache, A_wq, A_wo, B_x, B_k_cache, B_v_cache, B_wq, B_wo):
    def _A_ref(x, k_cache, v_cache, wq, wo):
        B, Sq, D = x.shape
        Hq, Dh = 32, 192
        Hkv, Sk = k_cache.shape[1], k_cache.shape[2]
        W = min(4096, max(256, Sk // 4))
        rep = Hq // Hkv
        q = (lambda x, *d: x.permute(*d))((x @ wq).reshape(B, Sq, Hq, Dh), 0, 2, 1, 3)
        k = (lambda x, n, axis: torch.repeat_interleave(x, n, dim=axis))(k_cache[:, :, Sk - W:, :], rep, axis=1)
        v = (lambda x, n, axis: torch.repeat_interleave(x, n, dim=axis))(v_cache[:, :, Sk - W:, :], rep, axis=1)
        scores = torch.einsum("bhqd,bhkd->bhqk", q, k) * (Dh ** -0.5)
        p = _softmax(scores, axis=-1)
        o = torch.einsum("bhqk,bhkd->bhqd", p, v)
        return (lambda x, *d: x.permute(*d))(o, 0, 2, 1, 3).reshape(B, Sq, Hq * Dh) @ wo

    def _B_ref(x, k_cache, v_cache, wq, wo):
        B, Sq, D = x.shape
        Hq, Dh = 32, 192
        Hkv, Sk = k_cache.shape[1], k_cache.shape[2]
        W = min(4096, max(256, Sk // 4))
        rep = Hq // Hkv
        q = (lambda x, *d: x.permute(*d))((x @ wq).reshape(B, Sq, Hq, Dh), 0, 2, 1, 3)
        k = (lambda x, n, axis: torch.repeat_interleave(x, n, dim=axis))(k_cache[:, :, Sk - W:, :], rep, axis=1)
        v = (lambda x, n, axis: torch.repeat_interleave(x, n, dim=axis))(v_cache[:, :, Sk - W:, :], rep, axis=1)
        scores = torch.einsum("bhqd,bhkd->bhqk", q, k) * (Dh ** -0.5)
        p = _softmax(scores, axis=-1)
        o = torch.einsum("bhqk,bhkd->bhqd", p, v)
        return (lambda x, *d: x.permute(*d))(o, 0, 2, 1, 3).reshape(B, Sq, Hq * Dh) @ wo

    a = _A_ref(A_x, A_k_cache, A_v_cache, A_wq, A_wo)
    b = _B_ref(B_x, B_k_cache, B_v_cache, B_wq, B_wo)
    return torch.concatenate([a, b], axis=-1)
```

```python
import sys, struct
KN = "concat_heads__sliding_block_cached__sliding_block_cached__decode"

def f32hex(x):
    return "0x%08x" % struct.unpack("<I", struct.pack("<f", x))[0]

F_WQ, F_KI, F_VI, F_QG, F_Q, F_P, F_PV, F_TK, MASK, F_O, F_WQA, F_X, SIG, F_SLOW, F_PP, F_B, F_DONE, F_GATE = 0, 4, 8, 12, 16, 20, 24, 28, 32, 36, 40, 44, 48, 64, 68, 72, 76, 80
ML, OL, QL, QG, QP = 256, 320, 512, 1024, 4096
OWNG = 3328
OP = QP
XP = QG
PL, BL = 10240, 8192
LDS_BYTES = 10752
HB, QD, QF, PD, PF, CB = 0x1000, 0x0, 0xc00, 0x1000, 0x2000, 0x3000
QSS, PSS, BS, BSB = 0x201000, 0x241000, 0x281000, 0x3C000
AC, ACB = 0x400000, 0x80000
SD, SDB = 0x800000, 0x80000
F_MH = 84
AFL, ACO = 0x2800, 0x7000
CNT1, BIG1 = 0x02000000, 0x00040000
TAGC = 0x9E3779B9
EPH, EPC = 0x900000, 0x85EBCA6A
SCALE = f32hex(192 ** -0.5)
LOG2E = f32hex(1.4426950408889634)
S_BH, S_B, S_H, S_J, S_BUD, S_T = 96, 97, 98, 99, 100, 101

def gen(stamps=False, nt="nt", gate_sleep=8, wv=99, wwo=99, wkl=99, prio=True, touch_out=True,
        slq=[1]*6+[3]*4+[6]*3+[12]*3, slp=[1]*32, vgate="ki", k_hold=99, k_hold2=99, wqa_at=4, cpf=0, skel=0, sq=0, sp=0, ssc='', w20=1, kpat=0, nogate=0, wk=99, minsleep=0, noslow=0, rs=(0,2), tmode=0, twave=10, dbgt=0, nred=1, rstag=6, bdir=0, prof0=0, tlb=0, nt_lines=20, fd=0, mminfo=0, qmerge=1, pf4=1, ncopy=3, tskip=0, tj3=0, bat=0, asc='', als=128, tout=1, ebias=0, dly=None, afm=0, fw=3, aun=128, awarm=0, osc='', wbl=0, wbs=0, ep2=0, fastp=0, wnt=0, ent=0, tnt=0, rnt=0, cnt_=0, snt=0, hs=0x8000, rba=0, dacf=0, ncp=4, chk_at=0, csl=8, dtail=0, now1=0, doc=0, dq=0):
    L = []
    e = L.append
    QSS, PSS = (0x201000, 0x241000) if hs == 0x8000 else (0x300000, 0x340000)
    assert HB + 64 * hs <= 0x300000 and hs % 256 == 0
    RBA = 0x3F0000
    N1 = "nt" if wnt & 1 else ""; N2 = "nt" if wnt & 2 else ""; NE = {0: "sc1", 1: "sc1 nt", 2: "nt", 3: ""}[ent]; NS = "nt" if snt else ""; NT_ = "nt" if tnt else ""; NR = "nt" if rnt else ""; NC = "nt" if cnt_ else ""
    if doc:
        for l in """Waves 0-3: 40 rows of wq each (partial q), later the wo rows of the workgroup; waves 4-7: 64 keys of K each;
waves 8-15: 128 keys x 64 dims of V each (workgroups j<3 of a head; j==3 only takes its share of wq and K).
Partial q vectors and scores go from workgroup to workgroup through d_ws as 16-B granules that carry the tag of
this launch (two epoch words + constant; the words are advanced once every reader of the tag is done).
Copies seen through the same L2 are fetched first, write-through copies are the fallback for any other placement.
The 96 partial sums of every output element meet in a 64-bit accumulator (arrival count + fixed-point value, cleared
and flagged by this launch); the last arrival rounds and stores.  The fixed-point unit comes from a sample of V and wo;
partial sums outside its range travel as tagged floats in side slots instead.""".split("\n"): e("; " + l)
    e(f"; @launch grid=(256,1,1) block=(1024,1,1) lds={LDS_BYTES}")
    e('.amdgcn_target "amdgcn-amd-amdhsa--gfx950"')
    e(".text")
    e(f".globl {KN}_kernel")
    e(".p2align 8")
    e(f".type {KN}_kernel,@function")
    e(f"{KN}_kernel:")
    if stamps or dbgt: e("  s_memrealtime s[94:95]")
    def kargs():
        e("  s_load_dwordx16 s[4:19], s[0:1], 0")
        e("  s_load_dwordx8 s[20:27], s[0:1], 64")
        e("  s_load_dwordx2 s[28:29], s[0:1], 96")
    if fastp: kargs()
    e("  s_cmp_ge_u32 s2, 256")
    e("  s_cbranch_scc1 L_end0")
    if cpf:
        e("  s_getpc_b64 s[32:33]")
        e("L_pc:")
        e("  v_lshlrev_b32 v5, 7, v0")
        e("  v_subrev_u32 v5, 0x12000, v5      ; (tid - 576) * 128")
        e("  v_cmp_gt_u32 vcc, L_end0-L_pc, v5")
        e("  s_bfe_u32 s34, s2, 0x20003")
        e("  s_cmp_lg_u32 s34, 3")
        e("  s_cbranch_scc1 L_nopf")
        e("  s_and_b64 exec, exec, vcc")
        e("  s_cbranch_execz L_nopf1")
        e(f"  global_load_dword v6, v5, s[32:33] {NC}")
        e("L_nopf1:")
        e("  s_mov_b64 exec, -1")
        e("L_nopf:")
    if not fastp: kargs()
    e("  v_lshrrev_b32 v1, 6, v0")
    e("  v_and_b32 v2, 63, v0              ; lane")
    e("  v_readfirstlane_b32 s3, v1")
    e(f"  s_and_b32 s{S_BH}, s2, 7")
    e(f"  s_lshr_b32 s{S_J}, s2, 5")
    e(f"  s_lshl_b32 s{S_J}, s{S_J}, 3")
    e(f"  s_or_b32 s{S_BH}, s{S_BH}, s{S_J}            ; bh")
    e(f"  s_lshr_b32 s{S_J}, s2, 3")
    e(f"  s_and_b32 s{S_J}, s{S_J}, 3             ; j")
    e(f"  s_lshr_b32 s{S_B}, s{S_BH}, 5            ; b")
    e(f"  s_and_b32 s{S_H}, s{S_BH}, 31            ; h")
    e(f"  s_mov_b32 s{S_BUD}, 0x200000")
    e("  v_mov_b32 v10, 0")
    if stamps: e("  v_mov_b32 v9, 0")
    e("  v_mov_b32 v11, 1")
    e("  v_lshlrev_b32 v12, 2, v2          ; lane*4")
    e("  ds_write_b32 v12, v10")
    e("  v_lshrrev_b32 v3, 3, v2           ; rho")
    e("  v_and_b32 v4, 7, v2               ; sub")
    e("  v_lshlrev_b32 v1, 6, v2           ; lane*64")
    e(f"  s_lshl_b32 s31, s{S_B}, 8")
    if hs == 0x8000: e(f"  s_lshl_b32 s0, s{S_BH}, 15")
    else: e(f"  s_mul_i32 s0, s{S_BH}, {hs}")
    if ep2: e(f"  s_add_u32 s1, s31, 0x{EPH:x}")
    def srd(d, p, n):
        e(f"  s_mov_b32 s{d}, s{p}"); e(f"  s_and_b32 s{d+1}, s{p+1}, 0xffff")
        e(f"  s_mov_b32 s{d+2}, {n}"); e(f"  s_mov_b32 s{d+3}, 0x20000")
    ST = "s[16:19]"; WS = "s[20:23]"
    def post(wait=True):
        e(f"  s_cmp_lg_u32 s{S_B}, 0")
        if wait:
            if prof0: e("  s_memrealtime s[88:89]")
            e("  s_waitcnt lgkmcnt(0)")
            if prof0: e("  s_memrealtime s[92:93]")
        e("  s_load_dword s30, s[28:29], s31")
        if ep2: e("  s_load_dword s2, s[28:29], s1")
        e("  s_cselect_b64 s[4:5], s[14:15], s[4:5]     ; x")
        if wait:
            e("  s_cselect_b64 s[6:7], s[16:17], s[6:7]     ; k")
            e("  s_cselect_b64 s[8:9], s[18:19], s[8:9]     ; v")
            e("  s_cselect_b64 s[10:11], s[20:21], s[10:11] ; wq")
        e("  s_cselect_b64 s[12:13], s[22:23], s[12:13] ; wo")
        e(f"  s_add_u32 s31, s0, 0x{HB:x}")
        srd(20, 28, 268435456)
    if not fastp: post()
    def get_tag():
        e("  s_waitcnt lgkmcnt(0)")
        e(f"  s_add_u32 s30, s30, 0x{TAGC:08x}")
        if ep2: e("  s_add_u32 s30, s30, s2")
    def put(idx, sr):
        e(f"  v_writelane_b32 v9, s{sr}, {2*idx}")
        e(f"  v_writelane_b32 v9, s{sr+1}, {2*idx+1}")
    cnt = [0]
    def newlab(p):
        cnt[0] += 1
        return f"L_{p}{cnt[0]}"
    def dbgmax(slot, wgs=((100, 0), (5, 8)), src=None):
        for wg, off in wgs:
            lb = newlab("dbg")
            e(f"  s_cmp_lg_u32 s2, {wg}")
            e(f"  s_cbranch_scc1 {lb}")
            if src is None:
                e("  s_memrealtime vcc")
                e("  s_waitcnt lgkmcnt(0)")
                e("  v_mov_b32 v13, vcc_lo")
            else: e(f"  v_mov_b32 v13, {src}")
            e(f"  v_mov_b32 v8, {4*(slot+off)}")
            e("  s_mov_b64 exec, 1")
            e("  global_store_dword v8, v13, s[26:27]")
            e("  s_mov_b64 exec, -1")
            e(f"{lb}:")
    DBG = {2: 4, 14: 5, 7: 6, 15: 3, 3: 7}
    def stamp(idx, wave=None):
        if dbgt and idx in DBG and wave is None: dbgmax(DBG[idx])
        if not stamps: return
        if dacf and idx in (5, 9) and wave != -2: return
        if dtail and idx not in (7, 11): return
        if dq and idx in (1, 5, 6, 13, 10) and wave != -3 and wave != -4: return
        if wave == -3: wave = dq - 1
        if wave == -4: wave = None
        if wave == -2: wave = None
        if prof0 and (idx in (5, 11, 6, 1, 13, 3, 4, 7, 8, 9, 10) and wave != -1): return
        if wave == -1: wave = prof0 - 1
        lb = newlab("st")
        if wave is not None:
            e(f"  s_cmp_lg_u32 s3, {wave}")
            e(f"  s_cbranch_scc1 {lb}")
        e(f"  s_memrealtime s[26:27]")
        e("  s_waitcnt lgkmcnt(0)")
        put(idx, 26)
        e(f"{lb}:")
    def dstamp(base):
        if not (stamps and dtail): return
        e("  s_memrealtime s[26:27]")
        e(f"  s_lshl_b32 s62, s14, 1")
        e(f"  s_add_u32 m0, s62, {2*base}")
        e("  s_waitcnt lgkmcnt(0)")
        e("  v_writelane_b32 v9, s26, m0")
        e("  s_add_u32 m0, m0, 1")
        e("  v_writelane_b32 v9, s27, m0")
    def wait_flag(off, val, sleep=1, va=10):
        lb = newlab("spin")
        sleep = max(sleep, minsleep)
        e(f"{lb}:")
        e(f"  ds_read_b32 v13, v{va} offset:{off}")
        e("  s_waitcnt lgkmcnt(0)")
        e(f"  v_readfirstlane_b32 s{S_T}, v13")
        e(f"  s_cmp_ge_u32 s{S_T}, {val}")
        e(f"  s_cbranch_scc1 {lb}_done")
        e(f"  s_sub_u32 s{S_BUD}, s{S_BUD}, 1")
        e("  s_cbranch_scc1 L_end")
        if sleep: e(f"  s_sleep {sleep}")
        e(f"  s_branch {lb}")
        e(f"{lb}_done:")
    def inc_flag(off):
        e("  s_mov_b64 exec, 1")
        e(f"  ds_add_u32 v10, v11 offset:{off}")
        e("  s_mov_b64 exec, -1")
    def inc_flag_rtn(off):
        e("  s_mov_b64 exec, 1")
        e(f"  ds_add_rtn_u32 v13, v10, v11 offset:{off}")
        e("  s_mov_b64 exec, -1")
        e("  s_waitcnt lgkmcnt(0)")
        e(f"  v_readfirstlane_b32 s{S_T}, v13")
    def set_flag(off):
        e("  s_mov_b64 exec, 1")
        e(f"  ds_write_b32 v10, v11 offset:{off}")
        e("  s_mov_b64 exec, -1")
    def set_exec(n):
        if n >= 64: e("  s_mov_b64 exec, -1")
        elif n > 32:
            e("  s_mov_b32 exec_lo, -1"); e(f"  s_mov_b32 exec_hi, 0x{(1 << (n-32)) - 1:x}")
        else:
            e(f"  s_mov_b32 exec_lo, 0x{(1 << n) - 1:x}"); e("  s_mov_b32 exec_hi, 0")
    def setprio(p):
        if prio: e(f"  s_setprio {p}")
    def make_sel(pos, base, t0):
        a, b_, c, z = t0, t0+1, t0+2, t0+3
        e(f"  v_and_b32 v{a}, 1, v{pos}")
        e(f"  v_cmp_eq_u32 vcc, 1, v{a}")
        e(f"  v_mov_b32 v{b_}, 0x0c0c0100")
        e(f"  v_mov_b32 v{c}, 0x01000c0c")
        e(f"  v_mov_b32 v{z}, 0x0c0c0c0c")
        e(f"  v_cndmask_b32 v{b_}, v{b_}, v{c}, vcc")
        e(f"  v_mov_b32 v{c}, 0x0c0c0302")
        e(f"  v_mov_b32 v{a}, 0x03020c0c")
        e(f"  v_cndmask_b32 v{c}, v{c}, v{a}, vcc")
        e(f"  v_lshrrev_b32 v{a}, 1, v{pos}")
        for r in range(4):
            e(f"  v_cmp_eq_u32 vcc, {r}, v{a}")
            e("  s_nop 1")
            e(f"  v_cndmask_b32 v{base+2*r}, v{z}, v{b_}, vcc")
            e(f"  v_cndmask_b32 v{base+2*r+1}, v{z}, v{c}, vcc")
    def mfma_chain(n, src, selb, dbase, acc, A0, extra=()):
        def perms(s):
            A = A0 + 4 * (s & 1)
            for rr in range(4):
                e(f"  v_perm_b32 v{A+rr}, v{src+s//2}, v{src+s//2}, v{selb+2*rr+(s&1)}")
        perms(0)
        for s in range(n):
            if s + 1 < n: perms(s + 1)
            else: e("  s_nop 0")
            if s < len(extra): e(extra[s])
            e(f"  s_waitcnt vmcnt({n-1-s})")
            A = A0 + 4 * (s & 1)
            d = dbase + 4 * s
            c = "0" if s == 0 else f"v[{acc}:{acc+3}]"
            e(f"  v_mfma_f32_16x16x32_bf16 v[{acc}:{acc+3}], v[{A}:{A+3}], v[{d}:{d+3}], {c}")
    def poll(regs, voff, soffs, ms):
        lb = newlab("poll")
        for rq, so in zip(regs, soffs):
            e(f"  buffer_load_dwordx4 v[{rq}:{rq+3}], v{voff}, {WS}, s{so} offen sc1")
        e(f"{lb}:")
        e("  s_waitcnt vmcnt(0)")
        for i, rq in enumerate(regs):
            e(f"  v_cmp_ne_u32 s[{ms[i]}:{ms[i]+1}], s30, v{rq+3}")
        e(f"  s_or_b64 s[70:71], s[{ms[0]}:{ms[0]+1}], s[{ms[1]}:{ms[1]+1}]")
        for i in range(2, len(regs)):
            e(f"  s_or_b64 s[70:71], s[70:71], s[{ms[i]}:{ms[i]+1}]")
        e("  s_cmp_eq_u64 s[70:71], 0")
        e(f"  s_cbranch_scc1 {lb}_done")
        e(f"  s_sub_u32 s{S_BUD}, s{S_BUD}, 16")
        e("  s_cbranch_scc1 L_end")
        if nred > 1:
            e(f"  ds_read_b32 v13, v10 offset:{F_DONE}")
            e("  s_waitcnt lgkmcnt(0)")
            e(f"  v_readfirstlane_b32 s{S_T}, v13")
            e(f"  s_cmp_lg_u32 s{S_T}, 0")
            e("  s_cbranch_scc1 L_end")
        for i, (rq, so) in enumerate(zip(regs, soffs)):
            e(f"  s_mov_b64 exec, s[{ms[i]}:{ms[i]+1}]")
            e(f"  s_cbranch_execz {lb}_s{i}")
            e(f"  buffer_load_dwordx4 v[{rq}:{rq+3}], v{voff}, {WS}, s{so} offen sc1")
            e(f"{lb}_s{i}:")
        e("  s_mov_b64 exec, -1")
        e(f"  s_branch {lb}")
        e(f"{lb}_done:")
    def flagtag(d):
        e(f"  s_getreg_b32 s{d}, hwreg(HW_REG_XCC_ID, 0, 4)")
        e(f"  s_add_u32 s{d}, s{d}, s30")
        e(f"  s_add_u32 s{d}, s{d}, 1")
    def block_fetch(lb, vt, sidx=5):
        e(f"{lb}_fast:")
        e("  s_mov_b32 s8, s0")
        for c in range(ncopy):
            if c:
                e(f"  s_add_u32 s8, s8, 0x{CB if c == 1 else 0x2000:x}")
                if rs[c-1]: e(f"  s_sleep {rs[c-1]}")
            for i in range(4):
                e(f"  s_load_dwordx16 s[{32+16*i}:{47+16*i}], s[28:29], s8 offset:{64*i}")
            e(f"  v_mov_b32 v{vt}, s30")
            e("  s_waitcnt lgkmcnt(0)")
            for g in range(16):
                e(f"  v_writelane_b32 v{vt}, s{35+4*g}, {g}")
            e(f"  v_cmp_ne_u32 vcc, s30, v{vt}")
            e("  s_cmp_eq_u64 vcc, 0")
            e(f"  s_cbranch_scc1 {lb}_ok")
        e(f"{lb}_slow:")
        stamp(sidx)
        e(f"  v_lshlrev_b32 v{vt}, 4, v2")
        e(f"  s_sub_u32 s{S_BUD}, s{S_BUD}, 64")
        e("  s_cbranch_scc1 L_end")
        set_exec(16)
        e(f"  buffer_load_dwordx4 v[120:123], v{vt}, {WS}, s0 offen sc1")
        e(f"  buffer_load_dwordx4 v[124:127], v{vt}, {WS}, s1 offen sc1")
        e("  s_waitcnt vmcnt(0)")
        e("  v_cmp_eq_u32 vcc, s30, v127")
        for d in range(4):
            e(f"  v_cndmask_b32 v{120+d}, v{120+d}, v{124+d}, vcc")
        e("  v_cmp_ne_u32 vcc, s30, v123")
        e("  s_mov_b64 exec, -1")
        e("  s_cmp_lg_u64 vcc, 0")
        e(f"  s_cbranch_scc1 {lb}_slow")
        for g in range(16):
            for d in range(3):
                e(f"  v_readlane_b32 s{32+4*g+d}, v{120+d}, {g}")
        e("  s_nop 3")
        e(f"{lb}_ok:")
    def paced(n, w, loadf, flag=F_PP, thr=1):
        lb = newlab("pc")
        for i in range(n):
            if i >= w:
                e(f"  ds_read_b32 v13, v10 offset:{flag}")
                e("  s_waitcnt lgkmcnt(0)")
                e(f"  v_readfirstlane_b32 s{S_T}, v13")
                e(f"  s_cmp_ge_u32 s{S_T}, {thr}")
                e(f"  s_cbranch_scc1 {lb}_f{i}")
                e(f"  s_waitcnt vmcnt({w-1})")
            loadf(i)
        if n > w:
            e(f"  s_branch {lb}_done")
            for i in range(w, n):
                e(f"{lb}_f{i}:")
                loadf(i)
            e(f"{lb}_done:")
    def touch(w):
        lb = newlab("tc")
        e(f"  s_cmp_lg_u32 s3, {w}")
        e(f"  s_cbranch_scc1 {lb}")
        if tj3:
            e(f"  s_cmp_lg_u32 s{S_J}, 3")
            e(f"  s_cbranch_scc1 {lb}")
            e("  s_mov_b32 s14, 0")
        else: e(f"  s_mul_i32 s14, s{S_J}, {nt_lines*128}")
        if tskip: e(f"  s_add_u32 s14, s14, {tskip}")
        e("  s_add_u32 s14, s14, s31")
        e("  v_lshlrev_b32 v126, 7, v2")
        set_exec(nt_lines)
        e(f"  buffer_load_dword v127, v126, {WS}, s14 offen {NT_}")
        e("  s_mov_b64 exec, -1")
        if tlb:
            e(f"  s_mul_i32 s14, s{S_H}, 1572864")
            e("  s_add_u32 s14, s14, 1179648")
            e(f"  s_lshl_b32 s15, s{S_J}, 7")
            e("  s_add_u32 s14, s14, s15")
            e(f"  v_mul_u32_u24 v126, {393216 // tlb}, v2")
            e("  v_add_u32 v126, s14, v126")
            e(f"  s_mul_i32 s14, s{S_H}, 192")
            e(f"  s_lshl_b32 s15, s{S_J}, 6")
            e("  s_add_u32 s14, s14, s15")
            e("  s_min_u32 s14, s14, 6080")
            e("  s_mul_i32 s14, s14, 1280")
            e(f"  v_mul_u32_u24 v124, {81920 // min(tlb, 16)}, v2")
            e("  v_add_u32 v124, s14, v124")
            set_exec(tlb)
            e("  global_load_dword v125, v126, s[8:9]")
            set_exec(min(tlb, 16))
            e("  global_load_dword v123, v124, s[12:13]")
            e("  s_mov_b64 exec, -1")
        e(f"{lb}:")

    def bat_setup():
        t = []
        t.append(f"  s_mul_i32 s45, s{S_B}, {5*(1024//aun)*als if afm >= 9 else ACB}|  s_mul_i32 s48, s14, {(1024//aun)*als}|  s_add_u32 s45, s45, s48")
        t.append(f"  s_add_u32 s45, s45, 0x{AC + 4096:x}|  s_add_u32 s48, s45, {(512//aun)*als}")
        t.append(f"  s_mov_b32 s46, 0|  s_mov_b32 s54, 0x{CNT1:x}|  s_sub_u32 s56, s54, s47|  s_sub_u32 s57, s47, 0x20000")
        t.append(f"  s_lshr_b32 s55, s47, 20|  s_sub_i32 s55, s55, 906|  s_max_i32 s55, s55, 0|  s_min_i32 s55, s55, 255|  s_lshl_b32 s55, s55, 23")
        t.append(f"  s_mul_i32 s49, s{S_B}, 1280|  s_lshl_b32 s50, s14, 8|  s_add_u32 s49, s49, s50")
        lg = {64: 3, 128: 4}[aun]
        t.append(f"  v_lshrrev_b32 v120, {lg}, v2|  v_and_b32 v121, {(1 << lg) - 1}, v2")
        t.append(f"  v_mul_u32_u24 v120, {als}, v120|  v_and_b32 v123, 15, v2")
        t.append(f"  v_lshl_add_u32 v120, v121, 3, v120|  v_bfe_u32 v121, v2, 4, 1|  v_lshlrev_b32 v123, 4, v123")
        t.append(f"  v_lshl_add_u32 v123, v121, 3, v123|  v_lshrrev_b32 v122, 5, v2")
        t.append(f"  v_lshl_add_u32 v121, v122, 2, v123")
        t.append(f"  s_mov_b32 s16, s24|  s_and_b32 s17, s25, 0xffff|  s_mov_b32 s18, 2560|  s_mov_b32 s19, 0x20000")
        return "\n".join(x.replace("|", "\x01") for x in t).replace("\x01", "\x02")
    if fastp:
        e("  s_cmp_ge_u32 s3, 4")
        e("  s_cbranch_scc1 L_nw")
    else:
        e("  s_cmp_ge_u32 s3, 8")
        e("  s_cbranch_scc1 L_v")
        e("  s_cmp_ge_u32 s3, 4")
        e("  s_cbranch_scc1 L_k")
    if fastp:
        so, rb, SW = 34, 35, "s[36:39]"
        if twave == 0:
            e(f"  s_mul_i32 s33, s{S_J}, {nt_lines*128}")
            e("  s_add_u32 s33, s33, s0")
            e(f"  s_add_u32 s33, s33, {HB + tskip}")
            e("  v_lshl_add_u32 v126, v2, 7, s33")
        e("  s_mov_b32 s38, 7864320")
        e("  s_mov_b32 s39, 0x20000")
    else:
        so, rb, SW = 14, 15, ST
        if twave == 0: touch(0)
        srd(16, 10, 7864320)
    e("  v_mul_u32_u24 v5, 12288, v3")
    e("  v_lshl_add_u32 v5, v4, 4, v5")
    e(f"  s_lshl_b32 s{rb}, s{S_J}, 2")
    e(f"  s_add_u32 s{rb}, s{rb}, s3")
    e(f"  s_mul_i32 s{so}, s{rb}, 491520")
    e(f"  s_mul_i32 s32, s{S_H}, 384")
    e(f"  s_add_u32 s{so}, s{so}, s32")
    if fastp:
        if twave == 0:
            e("  s_cmp_eq_u32 s3, 0")
            e(f"  s_cselect_b32 exec_lo, 0x{(1 << nt_lines) - 1:x}, 0")
            e("  s_mov_b32 exec_hi, 0")
        e(f"  s_cmp_lg_u32 s{S_B}, 0")
        if prof0: e("  s_memrealtime s[88:89]")
        e("  s_waitcnt lgkmcnt(0)")
        if prof0: e("  s_memrealtime s[92:93]")
        if twave == 0:
            e(f"  global_load_dword v127, v126, s[28:29] {NT_}")
            e("  s_mov_b64 exec, -1")
        e("  s_cselect_b64 s[36:37], s[20:21], s[10:11] ; wq")
        e("  s_and_b32 s37, s37, 0xffff")
    r = 16
    if prof0: e("  s_memrealtime s[60:61]")
    for rg in range(5):
        for t in range(3):
            e(f"  buffer_load_dwordx4 v[{r}:{r+3}], v5, {SW}, s{so} offen offset:{t*128} {nt}")
            if prof0 and rg == 0 and t == 0: e("  s_memrealtime s[62:63]")
            if prof0 and rg == 0 and t == 2: e("  s_memrealtime s[64:65]")
            if prof0 and rg == 2 and t == 2: e("  s_memrealtime s[66:67]")
            r += 4
        if rg < 4: e(f"  s_add_u32 s{so}, s{so}, 98304")
    if fastp: post(False)
    if prof0: e("  s_memrealtime s[90:91]")
    e("  s_barrier")
    if prof0:
        e("  s_memrealtime s[68:69]")
        e("  s_waitcnt lgkmcnt(0)")
        e(f"  s_cmp_lg_u32 s3, {prof0-1}"); e("  s_cbranch_scc1 L_pr0"); put(5, 92); put(11, 90); put(6, 88); put(3, 60); put(4, 62); put(7, 64); put(8, 66); put(9, 68); put(10, 94); e("L_pr0:")
    if dbgt:
        e("  s_cmp_lg_u32 s3, 0"); e("  s_cbranch_scc1 L_dbg0")
        dbgmax(1, ((0, 0), (100, 1), (5, 9), (255, 8)), "s94")
        e("L_dbg0:")
    e(f"  s_mul_i32 s15, s{rb}, 80")
    if stamps:
        lb = newlab("st")
        e("  s_cmp_lg_u32 s3, 0"); e(f"  s_cbranch_scc1 {lb}"); put(0, 94); e(f"{lb}:")
    e("  s_load_dwordx16 s[32:47], s[4:5], s15")
    e("  s_load_dwordx4 s[48:51], s[4:5], s15 offset:64")
    make_sel(4, 84, 92)
    e("  v_and_b32 v92, 1, v3")
    e("  v_cmp_eq_u32 vcc, 1, v92")
    e("  v_lshrrev_b32 v7, 5, v2")
    e("  v_mul_u32_u24 v7, 768, v7")
    for rr in range(4):
        e(f"  v_cndmask_b32 v{84+2*rr}, v{84+2*rr}, v{85+2*rr}, vcc")
    e("  v_lshl_add_u32 v7, v4, 5, v7")
    e("  v_bfe_u32 v14, v2, 4, 1")
    e("  v_lshl_add_u32 v7, v14, 4, v7")
    e("  s_mul_i32 s14, s3, 1536")
    e("  v_add_u32 v7, s14, v7")
    e("  v_lshlrev_b32 v14, 4, v2          ; lane*16")
    e(f"  s_mul_i32 s4, s{S_J}, 0x300")
    e("  s_add_u32 s4, s4, s31")
    e(f"  s_lshl_b32 s5, s{S_J}, 2")
    e("  s_add_u32 s5, s5, s31")
    e(f"  s_add_u32 s5, s5, 0x{QF:x}")
    e("  s_mov_b32 s7, 0x07060501")
    e("  s_mov_b32 s8, 0x07060502")
    e("  s_mov_b32 s9, 0x07060503")
    if qmerge:
        assert len(slq) == 16
        e(f"  s_mul_i32 s14, s{S_J}, 0x300-16")
        e(f"  s_sub_u32 s14, {QF - 48*64}, s14")
        e("  v_add_u32 v8, s14, v1")
        e("  v_cmp_gt_u32 vcc, 48, v2")
        e("  s_nop 1")
        e("  v_cndmask_b32 v8, v8, v14, vcc")
    get_tag()
    for d in range(4):
        if d < 2:
            e(f"  s_mov_b32 exec_lo, 0x{0xffff << (16*d):x}"); e("  s_mov_b32 exec_hi, 0")
        else:
            e("  s_mov_b32 exec_lo, 0"); e(f"  s_mov_b32 exec_hi, 0x{0xffff << (16*(d-2)):x}")
        for rg in range(5):
            e(f"  v_mov_b32 v{76+rg}, s{32+4*rg+d}")
    e("  s_mov_b64 exec, -1")
    for rg in range(5):
        A = 92 + 4 * (rg & 1)
        for rr in range(4):
            e(f"  v_perm_b32 v{A+rr}, v{76+rg}, v{76+rg}, v{84+2*rr}")
        e(f"  s_waitcnt vmcnt({12-3*rg})")
        if prof0 and rg == 0: stamp(1, -1)
        if prof0 and rg == 4: stamp(13, -1)
        if rg == wqa_at and k_hold < 24: inc_flag(F_WQA)
        else: e("  s_nop 0")
        for t in range(3):
            d = 16 + 12 * rg + 4 * t
            acc = 100 + 4 * t
            c = "0" if rg == 0 else f"v[{acc}:{acc+3}]"
            e(f"  v_mfma_f32_16x16x32_bf16 v[{acc}:{acc+3}], v[{A}:{A+3}], v[{d}:{d+3}], {c}")
    setprio(3)
    e("  v_mov_b32 v23, s30")
    flagtag(14)
    e("  v_mov_b32 v19, s14")
    if qmerge: e("  v_mov_b32 v20, s14")
    e("  s_mov_b32 exec_lo, 0x00ff00ff")
    e("  s_mov_b32 exec_hi, 0xff00ff00")
    e("  s_nop 4")
    for t in range(3):
        acc = 100 + 4 * t
        e(f"  ds_write_b128 v7, v[{acc}:{acc+3}] offset:{QP + t*256}")
    inc_flag_rtn(F_WQ)
    if skel:
        if sq:
            e(f"  s_cmp_lg_u32 s{S_T}, 3")
            e("  s_cbranch_scc1 L_tk_done")
            for i in range(sq):
                e(f"  buffer_store_dwordx4 v[20:23], v14, {WS}, s{4 if i != 2 else 6} offen {'sc1' if i == 2 else ssc}")
            stamp(2)
        else: stamp(2, 3)
        e("  s_branch L_tk_done")
    e(f"  s_cmp_lg_u32 s{S_T}, 3")
    e("  s_cbranch_scc1 L_tk")
    set_exec(48)
    for p in range(8):
        e(f"  ds_read_b128 v[{24+4*p}:{27+4*p}], v14 offset:{QP + 768*p}")
    for p in range(0, 8, 2):
        e(f"  s_waitcnt lgkmcnt({6-p})")
        e(f"  v_pk_add_f32 v[{24+4*p}:{25+4*p}], v[{24+4*p}:{25+4*p}], v[{28+4*p}:{29+4*p}]")
        e(f"  v_pk_add_f32 v[{26+4*p}:{27+4*p}], v[{26+4*p}:{27+4*p}], v[{30+4*p}:{31+4*p}]")
    for a, b_ in ((24, 32), (40, 48), (24, 40)):
        e(f"  v_pk_add_f32 v[{a}:{a+1}], v[{a}:{a+1}], v[{b_}:{b_+1}]")
        e(f"  v_pk_add_f32 v[{a+2}:{a+3}], v[{a+2}:{a+3}], v[{b_+2}:{b_+3}]")
    e("  v_perm_b32 v20, v24, v27, s7")
    e("  v_perm_b32 v21, v25, v27, s8")
    e("  v_perm_b32 v22, v26, v27, s9")
    if qmerge:
        e("  s_mov_b64 exec, -1")
        e(f"  buffer_store_dwordx4 v[20:23], v8, {WS}, s4 offen {N1}")
    else:
        e(f"  buffer_store_dwordx4 v[20:23], v14, {WS}, s4 offen")
        set_exec(len(slq))
        e(f"  buffer_store_dword v19, v1, {WS}, s5 offen")
    set_exec(48)
    if ncopy > 1:
        e(f"  s_add_u32 s4, s4, 0x{CB:x}")
        e(f"  buffer_store_dwordx4 v[20:23], v14, {WS}, s4 offen {N2}")
    if ncopy > 2:
        e("  s_add_u32 s4, s4, 0x2000")
        e(f"  buffer_store_dwordx4 v[20:23], v14, {WS}, s4 offen {N2}")
    e(f"  ds_write_b128 v14, v[20:23] offset:{OWNG}")
    inc_flag(F_QG)
    stamp(2)
    e("L_tk:")
    e("  s_sub_u32 s14, s3, 7")
    e("  s_max_i32 s14, s14, 0")
    e("  s_cmp_lt_u32 s3, 3")
    e("  s_cselect_b32 s14, s3, s14")
    e("  s_cselect_b32 s11, 0, 0x200")
    e("  s_mul_i32 s32, s14, 768")
    e("  s_add_u32 s32, s32, s11")
    e("  v_lshlrev_b32 v117, 4, v2         ; lane*16")
    e("  v_add_u32 v116, s32, v117")
    e("  s_add_u32 s14, s14, 1")
    e(f"  s_xor_b32 s14, s14, s{S_J}          ; producer")
    e(f"  s_lshl_b32 s15, s14, {4 if qmerge else 2}")
    e("  s_add_u32 s15, s15, s31")
    e(f"  s_add_u32 s15, s15, 0x{QF:x}")
    e("  s_mul_i32 s8, s14, 0x300")
    e("  s_add_u32 s8, s8, s11")
    e("  s_add_u32 s8, s8, s31")
    e("  s_lshl_b32 s9, s14, 10")
    e("  s_add_u32 s9, s9, s11")
    e(f"  s_lshl_b32 s34, s{S_BH}, 12")
    e(f"  s_add_u32 s34, s34, 0x{QSS:x}")
    e("  s_add_u32 s9, s9, s34")
    flagtag(33)
    wait_flag(F_QG, 1, sleep=0)
    if dq: stamp(10, -3)
    for k, z in enumerate(slq):
        e(f"  s_load_dword s32, s[28:29], s15 offset:{64*k}")
        e("  s_waitcnt lgkmcnt(0)")
        e("  s_cmp_eq_u32 s32, s33")
        e("  s_cbranch_scc1 L_qb_seen")
        if z and k + 1 < len(slq): e(f"  s_sleep {z}")
    set_exec(48)
    e(f"  ds_read_b128 v[112:115], v117 offset:{OWNG}")
    e(f"  ds_write_b32 v10, v11 offset:{F_SLOW}")
    e(f"  s_lshl_b32 s14, s{S_J}, 10")
    e("  s_add_u32 s14, s14, s34")
    e("  s_waitcnt lgkmcnt(0)")
    e(f"  buffer_store_dwordx4 v[112:115], v117, {WS}, s14 offen sc1")
    e("  s_mov_b64 exec, -1")
    e("  s_mov_b32 s15, 0")
    e("L_qb_slow:")
    stamp(11)
    e(f"  s_sub_u32 s{S_BUD}, s{S_BUD}, 64")
    e("  s_cbranch_scc1 L_end")
    set_exec(16)
    e(f"  buffer_load_dwordx4 v[112:115], v117, {WS}, s8 offen sc1")
    e(f"  buffer_load_dwordx4 v[124:127], v117, {WS}, s9 offen sc1")
    e("  s_waitcnt vmcnt(0)")
    e("  v_cmp_eq_u32 vcc, s30, v127")
    for d in range(4):
        e(f"  v_cndmask_b32 v{112+d}, v{112+d}, v{124+d}, vcc")
    e("  v_cmp_ne_u32 vcc, s30, v115")
    e("  s_mov_b64 exec, -1")
    e("  s_cmp_lg_u64 vcc, 0")
    e("  s_cbranch_scc1 L_qb_slow")
    e("  s_branch L_qb_put")
    e("L_qb_seen:")
    if dq: stamp(1, -3)
    if fd: e(f"  s_sleep {fd}")
    e("L_qb_fast:")
    e("  s_mov_b32 s14, s8")
    for c in range(ncopy):
        if c:
            if c == 2: pass
            elif mminfo and stamps:
                e("  s_mov_b32 s26, vcc_lo")
                e("  s_lshl_b32 s27, s3, 16")
                e("  s_or_b32 s27, s27, s11")
                e("  s_or_b32 s27, s27, 0x40000000")
                put(5, 26)
            else: stamp(5)
            e(f"  s_add_u32 s14, s14, 0x{CB if c == 1 else 0x2000:x}")
            if rs[c-1]: e(f"  s_sleep {rs[c-1]}")
        for i in range(4):
            e(f"  s_load_dwordx16 s[{32+16*i}:{47+16*i}], s[28:29], s14 offset:{64*i}")
        e("  v_mov_b32 v115, s30")
        e("  s_waitcnt lgkmcnt(0)")
        for g in range(16):
            e(f"  v_writelane_b32 v115, s{35+4*g}, {g}")
        e("  v_cmp_ne_u32 vcc, s30, v115")
        e("  s_cmp_eq_u64 vcc, 0")
        if c < ncopy - 1: e("  s_cbranch_scc1 L_qb_ok")
        else: e("  s_cbranch_scc0 L_qb_slow")
    e("L_qb_ok:")
    for d in range(3):
        for g in range(16):
            e(f"  v_writelane_b32 v{112+d}, s{32+4*g+d}, {g}")
    e("L_qb_put:")
    set_exec(16)
    e(f"  ds_write_b128 v116, v[112:115] offset:{QG}")
    e("  s_mov_b64 exec, -1")
    e("  s_cmp_lg_u32 s11, 0")
    e("  s_cbranch_scc1 L_qb_cnt")
    if dq: stamp(5, -3)
    e("  s_movk_i32 s11, 0x100")
    e("  s_add_u32 s8, s8, s11")
    e("  s_add_u32 s9, s9, s11")
    e("  v_add_u32 v116, s11, v116")
    e("  s_cmp_lg_u32 s15, 0")
    e("  s_cbranch_scc1 L_qb_fast")
    e("  s_branch L_qb_slow")
    e("L_qb_cnt:")
    if dq: stamp(6, -3)
    inc_flag_rtn(F_QG)
    e(f"  s_cmp_lg_u32 s{S_T}, 6")
    e("  s_cbranch_scc1 L_tk_done")
    set_exec(48)
    for p in range(4):
        e(f"  ds_read_b96 v[{100+4*p}:{102+4*p}], v117 offset:{QG + 768*p}")
    e("  s_mov_b32 s14, 0x0c04000c")
    e("  s_mov_b32 s15, 0x0402010c")
    e("  v_lshrrev_b32 v13, 1, v117")
    for p in range(4):
        q = 100 + 4 * p
        e(f"  s_waitcnt lgkmcnt({3-p})")
        e(f"  v_perm_b32 v{q+3}, v{q+1}, v{q}, s14")
        e(f"  v_and_b32 v{q}, 0xffffff00, v{q}")
        e(f"  v_and_b32 v{q+1}, 0xffffff00, v{q+1}")
        e(f"  v_perm_b32 v{q+3}, v{q+2}, v{q+3}, s15")
        e(f"  v_and_b32 v{q+2}, 0xffffff00, v{q+2}")
        if p & 1:
            e(f"  v_pk_add_f32 v[{q-4}:{q-3}], v[{q-4}:{q-3}], v[{q}:{q+1}]")
            e(f"  v_pk_add_f32 v[{q-2}:{q-1}], v[{q-2}:{q-1}], v[{q+2}:{q+3}]")
    e("  v_pk_add_f32 v[100:101], v[100:101], v[108:109]")
    e("  v_pk_add_f32 v[102:103], v[102:103], v[110:111]")
    e("  v_cvt_pk_bf16_f32 v112, v100, v101")
    e("  v_cvt_pk_bf16_f32 v113, v102, v103")
    e(f"  ds_write_b64 v13, v[112:113] offset:{QL}")
    inc_flag(F_Q)
    if dq: stamp(13, -4)
    e("L_tk_done:")
    e("  s_cmp_ge_u32 s3, 4")
    e("  s_cbranch_scc1 L_v2")
    e(f"  s_cmp_eq_u32 s{S_J}, 3")
    e("  s_cbranch_scc1 L_end")
    setprio(0)
    e("  s_mov_b32 s14, s3")
    e("L_wo:")
    srd(16, 12, 7864320)
    e("  v_lshrrev_b32 v3, 4, v2           ; g")
    e("  v_and_b32 v4, 15, v2              ; n")
    e("  v_mul_u32_u24 v6, 20480, v3")
    e("  v_lshl_add_u32 v6, v4, 4, v6")
    e(f"  s_mul_i32 s40, s{S_H}, 192")
    e(f"  s_lshl_b32 s41, s{S_J}, 6")
    e("  s_add_u32 s40, s40, s41")
    e("  s_mul_i32 s40, s40, 1280")
    e("  s_lshl_b32 s41, s14, 8")
    e("  s_add_u32 s32, s40, s41")
    for i in range(1, 6): e(f"  s_add_u32 s{32+i}, s{31+i}, 3840")
    make_sel(4, 80, 96)
    e("  v_lshlrev_b32 v7, 5, v3           ; o address g*32")
    e("  v_lshlrev_b32 v14, 5, v4")
    e("  v_lshl_add_u32 v14, v3, 4, v14")
    e(f"  s_mul_i32 s40, s{S_H}, 3")
    e(f"  s_add_u32 s40, s40, s{S_J}")
    e("  s_mul_i32 s40, s40, 2560")
    e("  s_lshl_b32 s41, s14, 9")
    e("  s_add_u32 s40, s40, s41")
    e(f"  s_mul_i32 s41, s{S_B}, 0x{BSB:x}")
    e("  s_add_u32 s40, s40, s41")
    e(f"  s_add_u32 s38, s40, 0x{BS:x}")
    e("  s_mov_b32 s39, 0x07060501")
    e("  s_mov_b32 s40, 0x07060502")
    e("  s_mov_b32 s41, 0x07060503")
    e("  v_mov_b32 v111, s30")
    if bat and not skel and afm == 9:
        e(f"  s_cmp_lg_u32 s3, {fw}")
        e("  s_cbranch_scc1 L_acf1")
        if rba:
            e(f"  s_mul_i32 s44, s{S_BH}, {rba}")
            e(f"  s_add_u32 s44, s44, 0x{RBA:x}")
        else: e(f"  s_add_u32 s44, s31, 0x{AFL:x}")
        e("  s_load_dwordx16 s[48:63], s[28:29], s44")
        if awarm:
            e(f"  s_mov_b32 s45, 0x{AC:x}")
            e("  s_mov_b64 exec, 1")
            e(f"  buffer_load_dword v116, v10, {WS}, s45 offen")
            if tout: e("  global_load_dword v117, v10, s[24:25]")
            e("  s_mov_b64 exec, -1")
        e("  v_lshlrev_b32 v112, 3, v2")
        e("  s_waitcnt lgkmcnt(0)")
        for i in range(6):
            e(f"  s_xor_b32 s{48+2*i}, s{48+2*i}, s30")
        e("  s_or_b32 s48, s48, s50")
        e("  s_or_b32 s52, s52, s54")
        e("  s_or_b32 s56, s56, s58")
        e("  s_or_b32 s48, s48, s52")
        e("  s_or_b32 s48, s48, s56")
        e("  s_cbranch_scc0 L_acf_ok")
        if dacf: stamp(5, -2)
        e("L_acf:")
        e(f"  s_sub_u32 s{S_BUD}, s{S_BUD}, 64")
        e("  s_cbranch_scc1 L_end")
        set_exec(6)
        e(f"  buffer_load_dwordx2 v[114:115], v112, {WS}, s44 offen sc1")
        e("  s_waitcnt vmcnt(0)")
        e("  v_cmp_ne_u32 vcc, s30, v114")
        e("  s_mov_b64 exec, -1")
        e("  v_readlane_b32 s59, v115, 5")
        e("  s_cmp_lg_u64 vcc, 0")
        e("  s_cbranch_scc1 L_acf")
        e("L_acf_ok:")
        if dacf: stamp(9, -2)
        e("  v_mov_b32 v113, s59")
        e("  s_mov_b64 exec, 1")
        e(f"  ds_write_b32 v10, v113 offset:{F_MH}")
        e("  s_mov_b64 exec, -1")
        e("L_acf1:")
    elif bat and not skel and afm != 10:
        e(f"  s_mul_i32 s44, s{S_B}, 0x{ACB:x}")
        e(f"  s_add_u32 s44, s44, 0x{AC:x}")
        if afm:
            e(f"  s_lshl_b32 s45, s{S_H}, 8")
            e("  s_add_u32 s44, s44, s45")
            e("  s_add_u32 s44, s44, 0x10000")
            e(f"  s_cmp_lg_u32 s3, {afm-1}")
            e("  s_cbranch_scc1 L_acf0")
        e("  s_mov_b64 exec, 1")
        e(f"  buffer_load_dwordx2 v[112:113], v10, {WS}, s44 offen sc1")
        if tout: e("  global_load_dword v114, v10, s[24:25]")
        e("  s_mov_b64 exec, -1")
        e("L_acf0:")
    wait_flag(F_VI, 8)
    e("  s_waitcnt vmcnt(0)")
    if bat and not skel and afm < 9:
        if afm:
            e(f"  s_cmp_lg_u32 s3, {afm-1}")
            e("  s_cbranch_scc1 L_acf1")
        e("L_acf:")
        e(f"  v_readfirstlane_b32 s{S_T}, v112")
        e("  v_readfirstlane_b32 s47, v113")
        e(f"  s_cmp_eq_u32 s{S_T}, s30")
        e("  s_cbranch_scc1 L_acf_ok")
        e(f"  s_sub_u32 s{S_BUD}, s{S_BUD}, 64")
        e("  s_cbranch_scc1 L_end")
        e(f"  buffer_load_dwordx2 v[112:113], v10, {WS}, s44 offen sc1")
        e("  s_waitcnt vmcnt(0)")
        e("  s_branch L_acf")
        e("L_acf_ok:")
        e("  s_mov_b64 exec, 1")
        e(f"  ds_write_b32 v10, v113 offset:{F_MH}")
        e("  s_mov_b64 exec, -1")
        e("L_acf1:")
    def wo_load(st):
        rr = 16 + 4 * st
        e(f"  buffer_load_dwordx4 v[{rr}:{rr+3}], v6, {ST}, s{32+st//3} offen offset:{(st%3)*1280} {nt}")
    e("  s_mul_i32 s42, s3, 5120-256")
    e("  s_add_u32 s42, s42, s32")
    e("  s_add_u32 s42, s42, 1024")
    e("  s_add_u32 s43, s42, 3840")
    def wo_load20(i):
        if i < 4:
            e(f"  buffer_load_dwordx4 v[{112+4*i}:{115+4*i}], v6, {ST}, s{42 + i//3} offen offset:{(i%3)*1280} {nt}")
        else: wo_load(i - 4)
    paced(20, wwo, wo_load20)
    if skel:
        e("  s_waitcnt vmcnt(0)")
        stamp(8, 0)
        e("  s_branch L_end")
    e("  s_lshl_b32 s42, s3, 3")
    e("  v_add_u32 v5, s42, v7")
    e("  s_lshl_b32 s42, s3, 9")
    e("  v_add_u32 v15, s42, v14")
    e("  s_sub_u32 s43, s38, s42")
    e("  v_lshlrev_b32 v12, 4, v2          ; lane*16")
    if stamps and not dtail and not now1:
        e("  s_cmp_lg_u32 s3, 1")
        e("  s_cbranch_scc1 L_w1s")
        e("  s_waitcnt vmcnt(0)")
        stamp(1)
        e("L_w1s:")
    if bat and afm:
        wait_flag(F_MH, 1)
        e(f"  s_mov_b32 s47, s{S_T}")
    wait_flag(F_O, 1)
    setprio(3)
    e(f"  ds_read_b64 v[100:101], v5 offset:{OL}")
    e(f"  ds_read_b128 v[88:91], v7 offset:{OL}")
    e(f"  ds_read_b128 v[92:95], v7 offset:{OL+16}")
    e("  s_waitcnt lgkmcnt(2)")
    for i in range(4):
        for rr in range(4):
            e(f"  v_perm_b32 v{96+rr}, v{100+i//2}, v{100+i//2}, v{80+2*rr+(i&1)}")
        e(f"  s_waitcnt vmcnt({19-i})")
        e("  s_nop 0")
        c = "0" if i == 0 else "v[108:111]"
        e(f"  v_mfma_f32_16x16x32_bf16 v[108:111], v[96:99], v[{112+4*i}:{115+4*i}], {c}")
        e("  s_nop 3")
    e("  s_waitcnt lgkmcnt(0)")
    if bat:
        ex = ["  s_nop 0", "  s_nop 0", "  s_mov_b32 exec_hi, 0\n" + f"  ds_write_b128 v15, v[108:111] offset:{XP}\n" + "  s_mov_b64 exec, 1\n"
              + f"  ds_add_u32 v10, v11 offset:{F_X}\n" + "  s_mov_b64 exec, -1"]
        ex += ["  s_mov_b32 s14, s3"] + [x.replace("\x02", "\n") for x in bat_setup().split("\n")]
        assert len(ex) <= 16, len(ex)
        mfma_chain(16, 88, 80, 16, 104, 96, ex)
        e("  s_nop 7")
        e("L_bat:")
        if dly:
            e(f"  s_cmp_lg_u32 s{S_B}, {dly[0]}")
            e("  s_cbranch_scc1 L_nodly")
            for i in range(dly[1]): e("  s_sleep 32")
            e("L_nodly:")
        e("  v_permlane32_swap_b32 v104, v106")
        e("  v_permlane32_swap_b32 v105, v107")
        e("  s_nop 0")
        e("  v_cvt_f64_f32 v[112:113], v104")
        e("  v_cvt_f64_f32 v[114:115], v105")
        e("  v_cmp_nlt_f32 s[50:51], |v104|, s55")
        e("  v_cmp_nlt_f32 s[52:53], |v105|, s55")
        e("  v_add_f64 v[112:113], v[112:113], s[46:47]")
        e("  v_add_f64 v[114:115], v[114:115], s[46:47]")
        e("  s_or_b64 vcc, s[50:51], s[52:53]")
        e("  v_add_u32 v113, s56, v113")
        e("  v_add_u32 v115, s56, v115")
        e("  s_cbranch_scc1 L_big")
        e("L_bat2:")
        e("  v_mov_b64 v[116:117], v[112:113]")
        e("  v_mov_b64 v[118:119], v[114:115]")
        e(f"  buffer_atomic_add_x2 v[116:117], v120, {WS}, s45 offen sc0 {asc}")
        e(f"  buffer_atomic_add_x2 v[118:119], v120, {WS}, s48 offen sc0 {asc}")
        stamp(15, 3)
        dstamp(1)
        e("  s_waitcnt vmcnt(0)")
        if dtail == 1: dstamp(12) if False else None
        dstamp2 = True
        if stamps and dtail:
            e("  s_cmp_ge_u32 s14, 4")
            e("  s_cbranch_scc1 L_dt4")
            dstamp(12)
            e("L_dt4:")
        e("  v_add_co_u32 v116, vcc, v116, v112")
        e("  v_add_co_u32 v118, s[52:53], v118, v114")
        e("  v_addc_co_u32 v117, vcc, v117, v113, vcc")
        e("  s_nop 0")
        e("  v_addc_co_u32 v119, s[52:53], v119, v115, s[52:53]")
        e(f"  v_add_u32 v112, 0x{(0x20000 - (96 << 25)) & 0xffffffff:x}, v117")
        e(f"  v_add_u32 v114, 0x{(0x20000 - (96 << 25)) & 0xffffffff:x}, v119")
        e("  v_and_b32 v117, 0x3ffff, v112")
        e("  v_and_b32 v119, 0x3ffff, v114")
        e("  v_cmp_gt_u32 s[50:51], s54, v112")
        e("  v_cmp_gt_u32 s[52:53], s54, v114")
        e("  v_add_u32 v117, s57, v117")
        e("  v_add_u32 v119, s57, v119")
        e("  s_or_b64 vcc, s[50:51], s[52:53]")
        e("  s_cbranch_scc0 L_wo_end")
        e("  v_add_f64 v[116:117], v[116:117], -s[46:47]")
        e("  v_add_f64 v[118:119], v[118:119], -s[46:47]")
        e("  v_cmp_le_u32 vcc, 0x40000, v112")
        e("  s_and_b64 s[58:59], vcc, s[50:51]")
        e("  v_cmp_le_u32 vcc, 0x40000, v114")
        e("  s_and_b64 s[60:61], vcc, s[52:53]")
        e("  s_or_b64 vcc, s[58:59], s[60:61]")
        e("  s_cbranch_scc1 L_side")
        e("L_bat3:")
        e("  v_cvt_f32_f64 v116, v[116:117]")
        e("  v_cvt_f32_f64 v118, v[118:119]")
        e("  s_mov_b64 exec, s[50:51]")
        e("  v_cvt_pk_bf16_f32 v116, v116, v116")
        e(f"  buffer_store_short v116, v121, {ST}, s49 offen {osc}")
        e("  s_mov_b64 exec, s[52:53]")
        e("  v_cvt_pk_bf16_f32 v118, v118, v118")
        e(f"  buffer_store_short v118, v121, {ST}, s49 offen offset:2 {osc}")
        e("  s_mov_b64 exec, -1")
        stamp(11)
        e("  s_cmp_lg_u32 s14, 0")
        e("  s_cbranch_scc1 L_wo_end")
        e("  s_bitcmp0_b32 s50, 0")
        e("  s_cbranch_scc1 L_wo_end")
        if ep2:
            e(f"  s_add_u32 s2, s2, 0x{EPC:08x}")
            e("  s_sub_u32 s15, s30, s2")
            e("  v_mov_b32 v20, s15")
            e("  v_mov_b32 v21, s2")
        else: e("  v_mov_b32 v20, s30")
        e(f"  s_lshl_b32 s14, s{S_B}, 8")
        e("  s_mov_b64 exec, 1")
        e(f"  buffer_store_dword v20, v10, {WS}, s14 offen {NE}")
        if ep2:
            e(f"  s_add_u32 s14, s14, 0x{EPH:x}")
            e(f"  buffer_store_dword v21, v10, {WS}, s14 offen {NE}")
    elif bdir:
        ex = ["  s_nop 0", "  s_nop 0", "  s_mov_b32 exec_hi, 0\n" + f"  ds_write_b128 v15, v[108:111] offset:{XP}\n" + "  s_mov_b64 exec, 1\n"
              + f"  ds_add_u32 v10, v11 offset:{F_X}\n" + "  s_mov_b64 exec, -1"]
        mfma_chain(16, 88, 80, 16, 104, 96, ex)
        e("  s_mov_b32 exec_hi, 0")
        e("  s_waitcnt lgkmcnt(0)")
        e("  v_mov_b32 v111, s30")
        e("  s_nop 4")
        e("  v_perm_b32 v108, v104, v107, s39")
        e("  v_perm_b32 v109, v105, v107, s40")
        e("  v_perm_b32 v110, v106, v107, s41")
        e(f"  buffer_store_dwordx4 v[108:111], v14, {WS}, s38 offen sc1")
        e("  s_mov_b64 exec, -1")
        stamp(15, 3)
    else:
        ex = ["  s_nop 0", "  s_nop 0", "  s_mov_b32 exec_hi, 0\n" + f"  ds_write_b128 v15, v[108:111] offset:{XP}\n" + "  s_mov_b64 exec, -1"]
        mfma_chain(16, 88, 80, 16, 104, 96, ex)
        e("  s_mov_b32 exec_hi, 0")
        e("  s_waitcnt lgkmcnt(0)")
        e("  v_mov_b32 v111, s30")
        e("  v_mov_b32 v35, s30")
        e("  s_nop 3")
        e("  v_perm_b32 v108, v104, v107, s39")
        e("  v_perm_b32 v109, v105, v107, s40")
        e("  v_perm_b32 v110, v106, v107, s41")
        e(f"  ds_write_b128 v15, v[108:111] offset:{BL}")
        inc_flag_rtn(F_X)
        e(f"  s_cmp_lg_u32 s{S_T}, 3")
        e("  s_cbranch_scc1 L_wo_end")
        e(f"  ds_read_b128 v[36:39], v12 offset:{BL}")
        e(f"  ds_read_b128 v[40:43], v12 offset:{BL+1024}")
        e("  s_mov_b32 exec_hi, 0")
        for p in range(4):
            e(f"  ds_read_b128 v[{16+4*p}:{19+4*p}], v14 offset:{XP + 512*p}")
        e("  s_mov_b64 exec, -1")
        e("  s_waitcnt lgkmcnt(5)")
        e(f"  buffer_store_dwordx4 v[36:39], v12, {WS}, s43 offen sc1")
        e("  s_waitcnt lgkmcnt(4)")
        e(f"  buffer_store_dwordx4 v[40:43], v12, {WS}, s43 offen offset:1024 sc1")
        e("  s_mov_b32 exec_hi, 0")
        e("  s_waitcnt lgkmcnt(2)")
        e("  v_pk_add_f32 v[16:17], v[16:17], v[20:21]")
        e("  v_pk_add_f32 v[18:19], v[18:19], v[22:23]")
        e("  s_waitcnt lgkmcnt(0)")
        e("  v_pk_add_f32 v[24:25], v[24:25], v[28:29]")
        e("  v_pk_add_f32 v[26:27], v[26:27], v[30:31]")
        e("  v_pk_add_f32 v[16:17], v[16:17], v[24:25]")
        e("  v_pk_add_f32 v[18:19], v[18:19], v[26:27]")
        e("  v_perm_b32 v32, v16, v19, s39")
        e("  v_perm_b32 v33, v17, v19, s40")
        e("  v_perm_b32 v34, v18, v19, s41")
        e(f"  buffer_store_dwordx4 v[32:35], v14, {WS}, s43 offen offset:2048 sc1")
        e("  s_mov_b64 exec, -1")
        stamp(15)
    e("L_wo_end:")
    e("  s_mov_b64 exec, -1")
    stamp(8, 0)
    e("  s_branch L_end")
    if bat and not skel:
        def side_base():
            e(f"  s_mul_i32 s58, s{S_B}, 0x{SDB:x}")
            e("  s_lshl_b32 s59, s14, 10")
            e("  s_add_u32 s58, s58, s59")
            e(f"  s_add_u32 s58, s58, 0x{SD:x}")
            e("  v_lshlrev_b32 v122, 3, v2")
        e("L_big:")
        side_base()
        e(f"  s_mul_i32 s59, s{S_H}, 3")
        e(f"  s_add_u32 s59, s59, s{S_J}")
        e("  s_mul_i32 s59, s59, 5120")
        e("  s_add_u32 s58, s58, s59")
        e("  v_mov_b32 v124, v104")
        e("  v_mov_b32 v125, s30")
        e("  v_mov_b32 v126, v105")
        e("  v_mov_b32 v127, s30")
        e("  s_mov_b64 exec, s[50:51]")
        e(f"  buffer_store_dwordx2 v[124:125], v122, {WS}, s58 offen sc0 sc1")
        e("  v_mov_b32 v112, 0")
        e(f"  v_mov_b32 v113, 0x{CNT1 + BIG1:x}")
        e("  s_mov_b64 exec, s[52:53]")
        e(f"  buffer_store_dwordx2 v[126:127], v122, {WS}, s58 offen offset:512 sc0 sc1")
        e("  v_mov_b32 v114, 0")
        e(f"  v_mov_b32 v115, 0x{CNT1 + BIG1:x}")
        e("  s_mov_b64 exec, -1")
        e("  s_waitcnt vmcnt(0)")
        e("  s_branch L_bat2")
        e("L_side:")
        e("  s_mov_b64 s[62:63], s[58:59]")
        side_base()
        e("  s_movk_i32 s59, 96")
        e("L_side1:")
        e(f"  buffer_load_dwordx2 v[124:125], v122, {WS}, s58 offen sc0 sc1")
        e(f"  buffer_load_dwordx2 v[126:127], v122, {WS}, s58 offen offset:512 sc0 sc1")
        e("  s_waitcnt vmcnt(0)")
        e("  v_cmp_eq_u32 vcc, s30, v125")
        e("  v_cvt_f64_f32 v[124:125], v124")
        e("  s_and_b64 exec, vcc, s[62:63]")
        e("  v_add_f64 v[116:117], v[116:117], v[124:125]")
        e("  s_mov_b64 exec, -1")
        e("  v_cmp_eq_u32 vcc, s30, v127")
        e("  v_cvt_f64_f32 v[126:127], v126")
        e("  s_and_b64 exec, vcc, s[60:61]")
        e("  v_add_f64 v[118:119], v[118:119], v[126:127]")
        e("  s_mov_b64 exec, -1")
        e("  s_add_u32 s58, s58, 5120")
        e("  s_sub_u32 s59, s59, 1")
        e("  s_cmp_lg_u32 s59, 0")
        e("  s_cbranch_scc1 L_side1")
        e("  s_branch L_bat3")
    if fastp:
        e("L_nw:")
        post()
        e("  s_cmp_ge_u32 s3, 8")
        e("  s_cbranch_scc1 L_v")
    e("L_k:")
    e(f"  s_lshl_b32 s24, s{S_J}, 2")
    e("  s_add_u32 s24, s24, s3")
    e("  s_sub_u32 s24, s24, 4             ; piece = 4j + (w-4)")
    srd(16, 6, 50331648)
    e(f"  v_mul_u32_u24 v5, {384 if kpat else 3072}, v3")
    e("  v_lshl_add_u32 v5, v4, 4, v5")
    e("  s_mul_i32 s14, s24, 24576")
    e(f"  s_mul_i32 s15, s{S_H}, 1572864")
    e("  s_add_u32 s14, s14, s15")
    e("  s_add_u32 s7, s14, 1179648        ; K base")
    if twave == 4: touch(4)
    e("  s_barrier")
    def k_load(n):
        g, t = divmod(n, 3)
        r = 16 + 4 * n
        if n == k_hold: wait_flag(F_WQA, 4, sleep=0)
        if n == k_hold2: wait_flag(F_QG, 1, sleep=0)
        e(f"  buffer_load_dwordx4 v[{r}:{r+3}], v5, {ST}, s7 offen offset:{g*384+t*128} {nt}")
    paced(24, wk, k_load, F_QG, 1)
    inc_flag(F_KI)
    stamp(9, 7)
    get_tag()
    if skel:
        e("  s_waitcnt vmcnt(0)")
        if sp:
            inc_flag_rtn(F_P)
            if sp == 1:
                e(f"  s_cmp_lg_u32 s{S_T}, 3")
                e("  s_cbranch_scc1 L_sk1")
            e("  v_lshlrev_b32 v14, 4, v2")
            e(f"  s_add_u32 s4, s31, 0x{PD:x}")
            e(f"  buffer_store_dwordx4 v[20:23], v14, {WS}, s4 offen {ssc}")
            e("L_sk1:")
        stamp(4, 4)
        stamp(14, 7)
        e(f"  s_cmp_eq_u32 s{S_J}, 3")
        e("  s_cbranch_scc1 L_end")
        e(f"  s_cmp_lg_u32 s3, {4 if not w20 else 99}")
        e("  s_cbranch_scc1 L_end")
        e("  s_mov_b32 s14, 4")
        e("  s_branch L_wo")
    e("  v_lshlrev_b32 v14, 4, v2          ; lane*16")
    e("  v_lshlrev_b32 v7, 4, v4")
    e("  v_lshl_add_u32 v12, v3, 5, v7")
    e("  v_lshrrev_b32 v12, 1, v12")
    e("  s_lshl_b32 s14, s3, 7")
    e("  v_add_u32 v12, s14, v12")
    e(f"  s_lshl_b32 s14, s{S_J}, 10")
    e("  s_add_u32 s4, s14, s31")
    e(f"  s_add_u32 s4, s4, 0x{PD:x}")
    e(f"  s_lshl_b32 s5, s{S_BH}, 12")
    e("  s_add_u32 s5, s5, s14")
    e(f"  s_add_u32 s5, s5, 0x{PSS:x}")
    e(f"  s_lshl_b32 s7, s{S_J}, 2")
    e("  s_add_u32 s7, s7, s31")
    e(f"  s_add_u32 s7, s7, 0x{PF:x}")
    e("  v_lshlrev_b32 v15, 3, v2          ; lane*8")
    flagtag(11)
    e("  v_mov_b32 v6, s11")
    e("  v_and_b32 v5, 1, v2")
    e("  v_cmp_eq_u32 s[40:41], 1, v5")
    wait_flag(F_Q, 1, sleep=0)
    setprio(2)
    stamp(3, 4)
    for t in range(3):
        e(f"  ds_read_b128 v[{112+4*t}:{115+4*t}], v7 offset:{QL + t*128}")
    e("  s_waitcnt lgkmcnt(0)")
    sums = [2, 3, 4, 5, 124, 125, 126, 127]
    def dots(g):
        e(f"  s_waitcnt vmcnt({21-3*g})")
        d = 16 + 12 * g
        for i in range(12):
            c = "0" if i == 0 else f"v{sums[g]}"
            e(f"  v_dot2_f32_bf16 v{sums[g]}, v{d+i}, v{112+i}, {c}")
    def red_half(hf, out):
        ss = sums[4*hf:4*hf+4]
        e("  s_nop 2")
        for pat in ["quad_perm:[1,0,3,2]", "quad_perm:[2,3,0,1]", "row_half_mirror"]:
            for s_ in ss:
                e(f"  v_add_f32_dpp v{s_}, v{s_}, v{s_} {pat} row_mask:0xf bank_mask:0xf")
        for pi in range(2):
            e(f"  v_cvt_pk_bf16_f32 v{out+pi}, v{ss[2*pi]}, v{ss[2*pi+1]}")
        for pi in range(2):
            e(f"  v_lshlrev_b32 v{ss[2*pi]}, 16, v{out+pi}")
            e(f"  v_and_b32 v{ss[2*pi+1]}, 0xffff0000, v{out+pi}")
        for s_ in ss:
            e(f"  v_mul_f32 v{s_}, {SCALE}, v{s_}")
        for pi in range(2):
            e(f"  v_cvt_pk_bf16_f32 v{out+pi}, v{ss[2*pi]}, v{ss[2*pi+1]}")
    for g in range(4): dots(g)
    red_half(0, 20)
    e("  v_mov_b32 v18, s30")
    e("  v_mov_b32 v19, s30")
    for g in range(4, 8): dots(g)
    red_half(1, 22)
    e("  v_cndmask_b32 v16, v20, v22, s[40:41]")
    e("  v_cndmask_b32 v17, v21, v23, s[40:41]")
    e("  s_mov_b32 exec_lo, 0x03030303")
    e("  s_mov_b32 exec_hi, 0x03030303")
    e(f"  ds_write_b64 v12, v[16:17] offset:{PL - 512}")
    inc_flag_rtn(F_P)
    stamp(4, 4)
    e(f"  s_cmp_lg_u32 s{S_T}, 3")
    e(f"  s_cbranch_scc1 {'L_chk' if afm == 10 else 'L_end'}")
    if nred > 2:
        e(f"  s_cmp_lg_u32 s{S_J}, 3")
        e("  s_cbranch_scc1 L_pp0")
        wait_flag(F_B, nred - 2, sleep=0)
        e("L_pp0:")
    e(f"  ds_read_b64 v[16:17], v15 offset:{PL}")
    e(f"  ds_read_b32 v13, v10 offset:{F_SLOW}")
    e("  s_waitcnt lgkmcnt(1)")
    e(f"  buffer_store_dwordx4 v[16:19], v14, {WS}, s4 offen {N1}")
    set_exec(len(slp))
    e(f"  buffer_store_dword v6, v1, {WS}, s7 offen {N1}")
    e("  s_mov_b64 exec, -1")
    if ncopy > 1:
        e(f"  s_add_u32 s4, s4, 0x{CB:x}")
        e(f"  buffer_store_dwordx4 v[16:19], v14, {WS}, s4 offen {N2}")
    if ncopy > 2:
        e("  s_add_u32 s4, s4, 0x2000")
        e(f"  buffer_store_dwordx4 v[16:19], v14, {WS}, s4 offen {N2}")
    e("  s_waitcnt lgkmcnt(0)")
    e(f"  v_readfirstlane_b32 s{S_T}, v13")
    e(f"  s_cmp_eq_u32 s{S_T}, 0")
    e("  s_cbranch_scc1 L_pp")
    e(f"  buffer_store_dwordx4 v[16:19], v14, {WS}, s5 offen sc1")
    e("L_pp:")
    set_flag(F_PP)
    stamp(14)
    e(f"  s_cmp_eq_u32 s{S_J}, 3")
    e("  s_cbranch_scc1 L_end")
    setprio(3)
    e(f"  s_add_u32 s10, s31, 0x{PF:x}")
    e(f"  s_lshl_b32 s8, 1, s{S_J}")
    e("  s_mov_b64 exec, 1")
    for k, z in enumerate(slp):
        e(f"  s_load_dwordx4 s[32:35], s[28:29], s10 offset:{64*k}")
        e("  s_waitcnt lgkmcnt(0)")
        for g in range(4):
            e(f"  s_cmp_eq_u32 s{32+g}, s11")
            e(f"  s_cselect_b32 s{32+g}, {1 << g}, 0")
        e("  s_or_b32 s32, s32, s33")
        e("  s_or_b32 s34, s34, s35")
        e("  s_or_b32 s8, s8, s32")
        e("  s_or_b32 s8, s8, s34")
        e("  v_mov_b32 v17, s8")
        e(f"  ds_write_b32 v10, v17 offset:{MASK}")
        e("  s_cmp_eq_u32 s8, 15")
        e("  s_cbranch_scc1 L_pw_done")
        if z and k + 1 < len(slp): e(f"  s_sleep {z}")
    e("  s_or_b32 s8, s8, 0x10000")
    e("  v_mov_b32 v17, s8")
    e(f"  ds_write_b32 v10, v17 offset:{MASK}")
    e("  s_mov_b64 exec, -1")
    stamp(11)
    e("L_pw_done:")
    e("  s_mov_b64 exec, -1")
    stamp(10)
    if wbl:
        e(f"  s_cmp_lg_u32 s{S_J}, 0")
        e("  s_cbranch_scc1 L_end")
        e(f"  s_cmp_lt_u32 s{S_BH}, {64 - 8*wbl}")
        e("  s_cbranch_scc1 L_end")
        if wbs == 1: wait_flag(F_VI, 8, sleep=4)
        if wbs == 2: wait_flag(F_PV, 1, sleep=4)
        e("  buffer_wbl2 sc1")
        e("  s_waitcnt vmcnt(0)")
    e("  s_branch L_end")
    def scale_calc():
        for b0 in (24, 28):
            for i in range(4): e(f"  v_and_b32 v{b0+i}, 0x7fff7fff, v{b0+i}")
            e(f"  v_pk_max_u16 v{b0}, v{b0}, v{b0+1}")
            e(f"  v_pk_max_u16 v{b0+2}, v{b0+2}, v{b0+3}")
            e(f"  v_pk_max_u16 v{b0}, v{b0}, v{b0+2}")
            e(f"  v_lshrrev_b32 v{b0+1}, 16, v{b0}")
            e(f"  v_and_b32 v{b0}, 0xffff, v{b0}")
            e(f"  v_max_u32 v{b0}, v{b0}, v{b0+1}")
            e(f"  v_lshrrev_b32 v{b0}, 7, v{b0}")
        e("  v_lshl_or_b32 v24, v28, 16, v24")
        e("  s_nop 1")
        for pat in ["quad_perm:[1,0,3,2]", "quad_perm:[2,3,0,1]", "row_half_mirror", "row_mirror"]:
            e(f"  v_mov_b32_dpp v25, v24 {pat} row_mask:0xf bank_mask:0xf")
            e("  v_pk_max_u16 v24, v24, v25")
            e("  s_nop 1")
        for l in range(4): e(f"  v_readlane_b32 s{32+l}, v24, {16*l}")
        for l in range(4):
            e(f"  s_lshr_b32 s{36+l}, s{32+l}, 16")
            e(f"  s_and_b32 s{32+l}, s{32+l}, 0xffff")
        for l in range(1, 4):
            e(f"  s_max_u32 s32, s32, s{32+l}")
            e(f"  s_max_u32 s36, s36, s{36+l}")
        e("  s_add_u32 s32, s32, s36")
        e(f"  s_add_u32 s32, s32, {789 + ebias}")
        e("  s_lshl_b32 s32, s32, 20")
        e("  s_or_b32 s32, s32, 0x80000")
    if afm == 10:
        e("L_chk:")
        e(f"  s_cmp_lg_u32 s{S_T}, {chk_at}")
        e("  s_cbranch_scc1 L_end")
        e(f"  s_cmp_eq_u32 s{S_J}, 3")
        e("  s_cbranch_scc1 L_end")
        setprio(0)
        srd(32, 8, 50331648)
        srd(36, 12, 7864320)
        e(f"  s_mov_b32 s42, {50331648 - 1024}")
        e(f"  buffer_load_dwordx4 v[24:27], v14, s[32:35], s42 offen {NS}")
        e(f"  buffer_load_dwordx4 v[28:31], v14, s[36:39], 0 offen {NS}")
        e(f"  v_mul_u32_u24 v22, {ncp * 16}, v14")
        e(f"  s_and_b32 s44, s{S_H}, {ncp - 1}")
        e(f"  s_mul_i32 s45, s{S_B}, {5 * ncp}")
        e("  s_add_u32 s44, s44, s45")
        e("  s_lshl_b32 s44, s44, 8")
        e(f"  s_add_u32 s44, s44, 0x{RBA:x}")
        e("L_chk1:")
        set_exec(5)
        e(f"  buffer_load_dword v21, v22, {WS}, s44 offen sc1")
        e("  s_waitcnt vmcnt(0)")
        e("  v_cmp_ne_u32 vcc, s30, v21")
        e("  s_mov_b64 exec, -1")
        e("  s_cmp_eq_u64 vcc, 0")
        e("  s_cbranch_scc1 L_chk2")
        if dacf: stamp(5, -2)
        e(f"  s_sub_u32 s{S_BUD}, s{S_BUD}, 64")
        e("  s_cbranch_scc1 L_end")
        e(f"  s_sleep {csl}")
        e("  s_branch L_chk1")
        e("L_chk2:")
        scale_calc()
        e("  v_mov_b32 v21, s32")
        e("  s_mov_b64 exec, 1")
        e(f"  ds_write_b32 v10, v21 offset:{F_MH}")
        if dacf:
            e("  s_mov_b64 exec, -1")
            stamp(9, -2)
        e("  s_branch L_end")
    e("L_v:")
    if bat and not skel and afm == 10:
        e("  s_cmp_lg_u32 s3, 11")
        e("  s_cbranch_scc1 L_noinit")
        e(f"  s_cmp_lg_u32 s{S_J}, 3")
        e("  s_cbranch_scc1 L_noinit")
        e(f"  s_cmp_gt_u32 s{S_H}, 4")
        e("  s_cbranch_scc1 L_noinit")
        lz = {64: 2, 128: 3}[aun]
        e(f"  v_lshrrev_b32 v32, {lz}, v2")
        e(f"  v_and_b32 v33, {(1 << lz) - 1}, v2")
        e(f"  v_mul_u32_u24 v32, {als}, v32")
        e("  v_lshl_add_u32 v32, v33, 4, v32")
        for i in range(4): e(f"  v_mov_b32 v{16+i}, 0")
        e(f"  s_mul_i32 s44, s{S_B}, 5")
        e(f"  s_add_u32 s44, s44, s{S_H}")
        e(f"  s_mul_i32 s45, s44, {(1024//aun)*als}")
        e(f"  s_add_u32 s45, s45, 0x{AC + 4096:x}")
        e(f"  buffer_store_dwordx4 v[16:19], v32, {WS}, s45 offen sc0 sc1")
        e("  s_barrier")
        e("  v_lshrrev_b32 v22, 2, v2")
        e("  v_and_b32 v33, 3, v2")
        e("  v_lshlrev_b32 v22, 8, v22")
        e("  v_lshl_add_u32 v22, v33, 4, v22")
        e(f"  s_mul_i32 s44, s44, {ncp * 256}")
        e(f"  s_add_u32 s44, s44, 0x{RBA:x}")
        get_tag()
        for i in range(4): e(f"  v_mov_b32 v{24+i}, s30")
        set_exec(4 * ncp)
        e("  s_waitcnt vmcnt(0)")
        e(f"  buffer_store_dwordx4 v[24:27], v22, {WS}, s44 offen sc0 sc1 {NR}")
        if dacf:
            e("  s_mov_b64 exec, -1")
            stamp(7)
            e("  s_waitcnt vmcnt(0)")
            stamp(8)
        e("  s_branch L_end")
        e("L_noinit:")
    if bat and not skel and afm == 9:
        e("  s_cmp_lg_u32 s3, 11")
        e("  s_cbranch_scc1 L_noinit")
        e(f"  s_cmp_lg_u32 s{S_J}, 3")
        e("  s_cbranch_scc1 L_noinit")
        e(f"  s_cmp_gt_u32 s{S_H}, 5")
        e("  s_cbranch_scc1 L_noinit")
        e(f"  s_cmp_eq_u32 s{S_H}, 5")
        e("  s_cbranch_scc1 L_sample")
        lz = {64: 2, 128: 3}[aun]
        e(f"  v_lshrrev_b32 v32, {lz}, v2")
        e(f"  v_and_b32 v33, {(1 << lz) - 1}, v2")
        e(f"  v_mul_u32_u24 v32, {als}, v32")
        e("  v_lshl_add_u32 v32, v33, 4, v32")
        for i in range(4): e(f"  v_mov_b32 v{16+i}, 0")
        e(f"  s_mul_i32 s45, s{S_B}, 5")
        e(f"  s_add_u32 s45, s45, s{S_H}")
        e(f"  s_mul_i32 s45, s45, {(1024//aun)*als}")
        e(f"  s_add_u32 s45, s45, 0x{AC + 4096:x}")
        e(f"  buffer_store_dwordx4 v[16:19], v32, {WS}, s45 offen sc0 sc1")
        e("  s_barrier")
        e("  v_mov_b32 v21, 0")
        e("  s_waitcnt vmcnt(0)")
        e("  s_branch L_ipub")
        e("L_sample:")
        e("  v_lshrrev_b32 v32, 1, v2")
        e("  v_and_b32 v33, 1, v2")
        e("  v_mul_u32_u24 v32, 1572864, v32")
        e("  v_lshl_add_u32 v32, v33, 4, v32")
        e("  v_add_u32 v32, 4095*384, v32")
        e("  v_mul_u32_u24 v33, 96*1280, v2")
        srd(32, 8, 50331648)
        srd(36, 12, 7864320)
        e(f"  buffer_load_dwordx4 v[24:27], v32, s[32:35], 0 offen {NS}")
        e(f"  buffer_load_dwordx4 v[28:31], v33, s[36:39], 0 offen {NS}")
        e("  s_barrier")
        e("  s_waitcnt vmcnt(0)")
        for b0 in (24, 28):
            for i in range(4): e(f"  v_and_b32 v{b0+i}, 0x7fff7fff, v{b0+i}")
            e(f"  v_pk_max_u16 v{b0}, v{b0}, v{b0+1}")
            e(f"  v_pk_max_u16 v{b0+2}, v{b0+2}, v{b0+3}")
            e(f"  v_pk_max_u16 v{b0}, v{b0}, v{b0+2}")
            e(f"  v_lshrrev_b32 v{b0+1}, 16, v{b0}")
            e(f"  v_and_b32 v{b0}, 0xffff, v{b0}")
            e(f"  v_max_u32 v{b0}, v{b0}, v{b0+1}")
            e(f"  v_lshrrev_b32 v{b0}, 7, v{b0}")
        e("  v_lshl_or_b32 v24, v28, 16, v24")
        e("  s_nop 1")
        for pat in ["quad_perm:[1,0,3,2]", "quad_perm:[2,3,0,1]", "row_half_mirror", "row_mirror"]:
            e(f"  v_mov_b32_dpp v25, v24 {pat} row_mask:0xf bank_mask:0xf")
            e("  v_pk_max_u16 v24, v24, v25")
            e("  s_nop 1")
        for l in range(4): e(f"  v_readlane_b32 s{32+l}, v24, {16*l}")
        for l in range(4):
            e(f"  s_lshr_b32 s{36+l}, s{32+l}, 16")
            e(f"  s_and_b32 s{32+l}, s{32+l}, 0xffff")
        for l in range(1, 4):
            e(f"  s_max_u32 s32, s32, s{32+l}")
            e(f"  s_max_u32 s36, s36, s{36+l}")
        e("  s_add_u32 s32, s32, s36")
        e(f"  s_add_u32 s32, s32, {789 + ebias}")
        e("  s_lshl_b32 s32, s32, 20")
        e("  s_or_b32 s32, s32, 0x80000")
        e("  v_mov_b32 v21, s32")
        e("L_ipub:")
        get_tag()
        e("  v_mov_b32 v20, s30")
        rs_ = rba if rba else hs
        e(f"  v_mul_u32_u24 v22, {rs_}, v2")
        e(f"  s_mul_i32 s44, s{S_B}, {32 * rs_}")
        e(f"  s_lshl_b32 s45, s{S_H}, 3")
        e("  s_add_u32 s44, s44, s45")
        e(f"  s_add_u32 s44, s44, 0x{RBA if rba else HB + AFL:x}")
        set_exec(32)
        e(f"  buffer_store_dwordx2 v[20:21], v22, {WS}, s44 offen sc0 sc1 {NR}")
        if dacf:
            e("  s_mov_b64 exec, -1")
            stamp(7)
            e("  s_waitcnt vmcnt(0)")
            stamp(8)
        e("  s_branch L_end")
        e("L_noinit:")
    e("  s_barrier")
    if twave > 4: touch(twave)
    e(f"  s_cmp_lg_u32 s{S_J}, 3")
    e("  s_cbranch_scc1 L_v1")
    if bat and not skel and afm < 9:
        e("  s_cmp_lg_u32 s3, 11")
        e("  s_cbranch_scc1 L_noinit")
        e(f"  s_cmp_lg_u32 s{S_H}, 0")
        e("  s_cbranch_scc1 L_end")
        get_tag()
        e(f"  s_mul_i32 s44, s{S_B}, 0x{ACB:x}")
        e(f"  s_add_u32 s44, s44, 0x{AC:x}")
        e(f"  v_mul_u32_u24 v5, {als}, v3")
        e("  v_lshl_add_u32 v5, v4, 4, v5")
        for i in range(4): e(f"  v_mov_b32 v{16+i}, 0")
        e("  v_mov_b32 v20, s30")
        e("  s_add_u32 s45, s44, 4096")
        for i in range(5):
            e(f"  buffer_store_dwordx4 v[16:19], v5, {WS}, s45 offen sc0 sc1")
            e(f"  s_add_u32 s45, s45, {8*als}")
        e("  v_lshrrev_b32 v32, 1, v2")
        e("  v_and_b32 v33, 1, v2")
        e("  v_mul_u32_u24 v32, 1572864, v32")
        e("  v_lshl_add_u32 v32, v33, 4, v32")
        e("  v_add_u32 v32, 4095*384, v32")
        e("  v_mul_u32_u24 v33, 96*1280, v2")
        srd(32, 8, 50331648)
        srd(36, 12, 7864320)
        e("  buffer_load_dwordx4 v[24:27], v32, s[32:35], 0 offen")
        e("  buffer_load_dwordx4 v[28:31], v33, s[36:39], 0 offen")
        e("  s_waitcnt vmcnt(0)")
        for b0 in (24, 28):
            for i in range(4): e(f"  v_and_b32 v{b0+i}, 0x7fff7fff, v{b0+i}")
            e(f"  v_pk_max_u16 v{b0}, v{b0}, v{b0+1}")
            e(f"  v_pk_max_u16 v{b0+2}, v{b0+2}, v{b0+3}")
            e(f"  v_pk_max_u16 v{b0}, v{b0}, v{b0+2}")
            e(f"  v_lshrrev_b32 v{b0+1}, 16, v{b0}")
            e(f"  v_and_b32 v{b0}, 0xffff, v{b0}")
            e(f"  v_max_u32 v{b0}, v{b0}, v{b0+1}")
            e(f"  v_lshrrev_b32 v{b0}, 7, v{b0}")
        e("  v_lshl_or_b32 v24, v28, 16, v24")
        e("  s_nop 1")
        for pat in ["quad_perm:[1,0,3,2]", "quad_perm:[2,3,0,1]", "row_half_mirror", "row_mirror"]:
            e(f"  v_mov_b32_dpp v25, v24 {pat} row_mask:0xf bank_mask:0xf")
            e("  v_pk_max_u16 v24, v24, v25")
            e("  s_nop 1")
        for l in range(4): e(f"  v_readlane_b32 s{32+l}, v24, {16*l}")
        for l in range(4):
            e(f"  s_lshr_b32 s{36+l}, s{32+l}, 16")
            e(f"  s_and_b32 s{32+l}, s{32+l}, 0xffff")
        for l in range(1, 4):
            e(f"  s_max_u32 s32, s32, s{32+l}")
            e(f"  s_max_u32 s36, s36, s{36+l}")
        e("  s_add_u32 s32, s32, s36")
        e(f"  s_add_u32 s32, s32, {789 + ebias}")
        e("  s_lshl_b32 s32, s32, 20")
        e("  s_or_b32 s32, s32, 0x80000")
        e("  v_mov_b32 v21, s32")
        if afm:
            e("  v_lshlrev_b32 v22, 8, v2")
            e("  s_add_u32 s44, s44, 0x10000")
            set_exec(32)
            e(f"  buffer_store_dwordx2 v[20:21], v22, {WS}, s44 offen sc0 sc1")
        else:
            e("  s_mov_b64 exec, 1")
            e(f"  buffer_store_dwordx2 v[20:21], v10, {WS}, s44 offen sc0 sc1")
        e("  s_branch L_end")
        e("L_noinit:")
    if not skel:
        e(f"  s_cmp_ge_u32 s3, {max(10, 8 + nred)}")
        e("  s_cbranch_scc1 L_end")
        get_tag()
        if nred > 2:
            e("  s_cmp_lt_u32 s3, 10")
            e("  s_cbranch_scc1 L_v0")
            inc_flag(F_B)
            e("  s_branch L_red")
            e("L_v0:")
        setprio(3)
        e("  s_branch L_tk")
    e("  s_branch L_end")
    e("L_v1:")
    srd(16, 8, 50331648)
    e("  v_mul_u32_u24 v6, 6144, v3")
    e("  v_lshl_add_u32 v6, v4, 4, v6")
    e("  s_sub_u32 s6, s3, 8               ; vw")
    e(f"  s_mul_i32 s15, s{S_H}, 1572864")
    e("  s_mul_i32 s14, s6, 49152")
    e("  s_add_u32 s14, s14, 1179648")
    e("  s_add_u32 s14, s14, s15")
    e(f"  s_lshl_b32 s15, s{S_J}, 7")
    e("  s_add_u32 s4, s14, s15")
    e("  s_add_u32 s5, s4, 3072")
    make_sel(4, 80, 96)
    e("  v_lshrrev_b32 v14, 5, v2")
    e("  v_lshlrev_b32 v14, 8, v14")
    e("  v_lshl_add_u32 v14, v4, 5, v14")
    e("  v_bfe_u32 v15, v2, 4, 1")
    e("  v_lshl_add_u32 v14, v15, 4, v14")
    e("  s_lshl_b32 s15, s6, 9")
    e("  v_add_u32 v14, s15, v14")
    e("  s_lshl_b32 s15, s6, 3")
    e("  v_mov_b32 v1, s15                 ; (n,l) address")
    e(f"  s_mov_b32 s7, {LOG2E}")
    e("  s_lshl_b32 s14, s6, 9")
    e("  s_add_u32 s0, s14, s31")
    e(f"  s_add_u32 s0, s0, 0x{PD:x}")
    e(f"  s_lshl_b32 s1, s{S_BH}, 12")
    e("  s_add_u32 s1, s1, s14")
    e(f"  s_add_u32 s1, s1, 0x{PSS:x}")
    e("  s_lshr_b32 s10, s6, 1             ; producer")
    e("  s_and_b32 s14, s6, 1")
    e("  s_lshl_b32 s14, s14, 8")
    e("  v_lshlrev_b32 v7, 5, v3")
    e("  v_add_u32 v7, s14, v7")
    get_tag()
    if not skel:
        e("  s_cmp_ge_u32 s3, 10")
        e("  s_cbranch_scc1 L_v3")
        setprio(3)
        e("  s_branch L_tk")
        e("L_v2:")
        setprio(0)
        e(f"  s_cmp_lg_u32 s{S_J}, 3")
        e("  s_cbranch_scc1 L_v3")
        if not bat:
            e(f"  s_cmp_lt_u32 s3, {8 + nred}")
            e("  s_cbranch_scc1 L_red")
        e("  s_branch L_end")
        e("L_v3:")
    if vgate == "qg": wait_flag(F_QG, 1)
    if not nogate: wait_flag(F_KI, 4)
    def v_load(ld):
        rr = 16 + 4 * ld
        e(f"  buffer_load_dwordx4 v[{rr}:{rr+3}], v6, {ST}, s{4 + ld//8} offen offset:{(ld%8)*384} {nt}")
    paced(16, wv, v_load)
    inc_flag(F_VI)
    stamp(12, 15)
    if skel:
        e("  s_waitcnt vmcnt(0)")
        stamp(13, 15)
        stamp(6, 8)
        e("  s_branch L_end")
    setprio(3)
    e(f"  s_cmp_lg_u32 s10, s{S_J}")
    e("  s_cbranch_scc1 L_vf0")
    wait_flag(F_P, 4, sleep=0)
    e(f"  ds_read_b128 v[88:91], v7 offset:{PL}")
    e(f"  ds_read_b128 v[92:95], v7 offset:{PL+16}")
    e("  s_waitcnt lgkmcnt(0)")
    e("  s_branch L_vs")
    for half in range(2):
        lb = f"L_vf{half}"
        e(f"{lb}:")
        if half == 0:
            e(f"  ds_read_b32 v13, v10 offset:{MASK}")
            e("  s_waitcnt lgkmcnt(0)")
            e(f"  v_readfirstlane_b32 s11, v13")
            e(f"  s_bitcmp1_b32 s11, s10")
            e(f"  s_cbranch_scc1 {lb}_fast")
            e(f"  s_bitcmp1_b32 s11, 16")
            e(f"  s_cbranch_scc1 {lb}_slow")
            e(f"  s_sub_u32 s{S_BUD}, s{S_BUD}, 1")
            e("  s_cbranch_scc1 L_end")
            if minsleep: e(f"  s_sleep {minsleep}")
            e(f"  s_branch {lb}")
        else:
            e(f"  s_bitcmp0_b32 s11, s10")
            e(f"  s_cbranch_scc1 {lb}_slow")
        block_fetch(lb, 112, 11)
        for r4 in range(4):
            m = 0xff << (8 * r4)
            if half == 0:
                e(f"  s_mov_b32 exec_lo, 0x{m:x}"); e("  s_mov_b32 exec_hi, 0")
            else:
                e("  s_mov_b32 exec_lo, 0"); e(f"  s_mov_b32 exec_hi, 0x{m:x}")
            for k in range(8):
                e(f"  v_mov_b32 v{88+k}, s{32 + 16*r4 + 4*(k//2) + (k&1)}")
        e("  s_mov_b64 exec, -1")
        if half == 0:
            e("  s_add_u32 s0, s0, 256")
            e("  s_add_u32 s1, s1, 256")
    e("L_vs:")
    stamp(6, 8)
    for i in range(8):
        e(f"  v_lshlrev_b32 v{112+2*i}, 16, v{88+i}")
        e(f"  v_and_b32 v{113+2*i}, 0xffff0000, v{88+i}")
    e("  v_max3_f32 v96, v112, v113, v114")
    e("  v_max3_f32 v97, v115, v116, v117")
    e("  v_max3_f32 v98, v118, v119, v120")
    e("  v_max3_f32 v99, v121, v122, v123")
    e("  v_max3_f32 v96, v96, v124, v125")
    e("  v_max3_f32 v97, v97, v126, v127")
    e("  v_max3_f32 v96, v96, v98, v99")
    e("  v_max_f32 v96, v96, v97")
    e("  s_nop 1")
    e("  v_max_f32_dpp v96, v96, v96 row_ror:8 row_mask:0xf bank_mask:0xf")
    e("  v_mov_b32 v97, v96")
    e("  s_nop 1")
    e("  v_permlane16_swap_b32 v96, v97")
    e("  s_nop 1")
    e("  v_max_f32 v96, v96, v97")
    e("  v_mov_b32 v97, v96")
    e("  s_nop 1")
    e("  v_permlane32_swap_b32 v96, v97")
    e("  s_nop 1")
    e("  v_max_f32 v96, v96, v97")
    e("  v_mul_f32 v108, s7, v96")
    e("  v_sub_f32 v108, 0, v108")
    for i in range(16):
        e(f"  v_fma_f32 v{112+i}, v{112+i}, s7, v108")
    for i in range(16):
        e(f"  v_exp_f32 v{112+i}, v{112+i}")
    for i in range(8):
        e(f"  v_cvt_pk_bf16_f32 v{88+i}, v{112+2*i}, v{113+2*i}")
    ex = [f"  v_pk_add_f32 v[{112+4*i}:{113+4*i}], v[{112+4*i}:{113+4*i}], v[{114+4*i}:{115+4*i}]" for i in range(4)]
    ex += ["  v_pk_add_f32 v[112:113], v[112:113], v[116:117]",
           "  v_pk_add_f32 v[120:121], v[120:121], v[124:125]",
           "  v_pk_add_f32 v[112:113], v[112:113], v[120:121]",
           "  v_add_f32 v109, v112, v113",
           "  v_add_f32_dpp v109, v109, v109 row_ror:8 row_mask:0xf bank_mask:0xf",
           "  v_mov_b32 v110, v109",
           "  v_permlane16_swap_b32 v109, v110",
           "  v_add_f32 v109, v109, v110",
           "  v_mov_b32 v110, v109",
           "  v_permlane32_swap_b32 v109, v110",
           "  v_add_f32 v109, v109, v110"]
    mfma_chain(16, 88, 80, 16, 104, 96, ex)
    e("  s_mov_b64 exec, 1")
    e(f"  ds_write_b64 v1, v[108:109] offset:{ML}")
    e("  s_mov_b32 exec_lo, 0x00ff00ff")
    e("  s_mov_b32 exec_hi, 0xff00ff00")
    e("  s_nop 4")
    e(f"  ds_write_b128 v14, v[104:107] offset:{OP}")
    inc_flag_rtn(F_PV)
    stamp(13, 15)
    e(f"  s_cmp_lg_u32 s{S_T}, 7")
    e("  s_cbranch_scc1 L_end")
    for i in range(4):
        e(f"  ds_read_b128 v[{32+4*i}:{35+4*i}], v10 offset:{ML+16*i}")
    for i in range(8):
        e(f"  ds_read2st64_b32 v[{16+2*i}:{17+2*i}], v12 offset0:{OP//256 + 2*i} offset1:{OP//256 + 2*i + 1}")
    e("  v_lshlrev_b32 v15, 1, v2")
    e("  s_waitcnt lgkmcnt(8)")
    e("  v_min3_f32 v48, v32, v34, v36")
    e("  v_min3_f32 v49, v38, v40, v42")
    e("  v_min3_f32 v48, v48, v44, v46")
    e("  v_min_f32 v48, v48, v49")
    for i in range(8):
        e(f"  v_sub_f32 v{32+2*i}, v48, v{32+2*i}")
    for i in range(8):
        e(f"  v_exp_f32 v{32+2*i}, v{32+2*i}")
    e("  v_mul_f32 v48, v32, v33")
    e("  v_mul_f32 v49, v34, v35")
    for i in range(2, 8):
        e(f"  v_fma_f32 v{48+(i&1)}, v{32+2*i}, v{33+2*i}, v{48+(i&1)}")
    e("  v_add_f32 v48, v48, v49")
    e("  v_rcp_f32 v48, v48")
    e("  s_waitcnt lgkmcnt(0)")
    for i in range(8):
        e(f"  v_add_f32 v{16+2*i}, v{16+2*i}, v{17+2*i}")
    e("  v_mul_f32 v50, v16, v32")
    e("  v_mul_f32 v51, v18, v34")
    for i in range(2, 8):
        e(f"  v_fma_f32 v{50+(i&1)}, v{16+2*i}, v{32+2*i}, v{50+(i&1)}")
    e("  v_add_f32 v50, v50, v51")
    e("  v_mul_f32 v50, v50, v48")
    e("  v_cvt_pk_bf16_f32 v50, v50, v50")
    e(f"  ds_write_b16 v15, v50 offset:{OL}")
    set_flag(F_O)
    stamp(7)
    if bat:
        e("  s_mov_b32 s14, 4")
        e("  v_and_b32 v14, 15, v2")
        e("  v_bfe_u32 v15, v2, 4, 1")
        e("  v_lshlrev_b32 v14, 5, v14")
        e("  v_lshl_add_u32 v14, v15, 4, v14")
        wait_flag(F_X, 1, sleep=0)
        e(f"  ds_read_b32 v13, v10 offset:{F_MH}")
        e("  s_waitcnt lgkmcnt(0)")
        e("  v_readfirstlane_b32 s47, v13")
        e(bat_setup().replace("\x02", "\n"))
        wait_flag(F_X, 4, sleep=0)
        e("  s_mov_b32 exec_hi, 0")
        for p in range(4):
            e(f"  ds_read_b128 v[{16+4*p}:{19+4*p}], v14 offset:{XP + 512*p}")
        e("  s_waitcnt lgkmcnt(2)")
        e("  v_pk_add_f32 v[16:17], v[16:17], v[20:21]")
        e("  v_pk_add_f32 v[18:19], v[18:19], v[22:23]")
        e("  s_waitcnt lgkmcnt(0)")
        e("  v_pk_add_f32 v[24:25], v[24:25], v[28:29]")
        e("  v_pk_add_f32 v[26:27], v[26:27], v[30:31]")
        e("  v_pk_add_f32 v[104:105], v[16:17], v[24:25]")
        e("  v_pk_add_f32 v[106:107], v[18:19], v[26:27]")
        e("  s_mov_b64 exec, -1")
        e("  s_nop 1")
        e("  s_branch L_bat")
    elif bdir:
        e(f"  s_mul_i32 s40, s{S_H}, 3")
        e(f"  s_add_u32 s40, s40, s{S_J}")
        e("  s_mul_i32 s40, s40, 2560")
        e(f"  s_mul_i32 s41, s{S_B}, 0x{BSB:x}")
        e("  s_add_u32 s40, s40, s41")
        e(f"  s_add_u32 s43, s40, 0x{BS:x}")
        e("  s_mov_b32 s39, 0x07060501")
        e("  s_mov_b32 s40, 0x07060502")
        e("  s_mov_b32 s41, 0x07060503")
        e("  v_lshlrev_b32 v14, 4, v2")
        e("  v_mov_b32 v35, s30")
        wait_flag(F_X, 4, sleep=0)
        e("  s_mov_b32 exec_hi, 0")
        for p in range(4):
            e(f"  ds_read_b128 v[{16+4*p}:{19+4*p}], v14 offset:{XP + 512*p}")
        e("  s_waitcnt lgkmcnt(2)")
        e("  v_pk_add_f32 v[16:17], v[16:17], v[20:21]")
        e("  v_pk_add_f32 v[18:19], v[18:19], v[22:23]")
        e("  s_waitcnt lgkmcnt(0)")
        e("  v_pk_add_f32 v[24:25], v[24:25], v[28:29]")
        e("  v_pk_add_f32 v[26:27], v[26:27], v[30:31]")
        e("  v_pk_add_f32 v[16:17], v[16:17], v[24:25]")
        e("  v_pk_add_f32 v[18:19], v[18:19], v[26:27]")
        e("  v_perm_b32 v32, v16, v19, s39")
        e("  v_perm_b32 v33, v17, v19, s40")
        e("  v_perm_b32 v34, v18, v19, s41")
        e(f"  buffer_store_dwordx4 v[32:35], v14, {WS}, s43 offen offset:2048 sc1")
        e("  s_mov_b64 exec, -1")
    e("  s_branch L_end")
    L_keep = L
    if bat: L = []; e = L.append
    e("L_red:")
    e(f"  s_cmp_ge_u32 s{S_H}, 20")
    e("  s_cbranch_scc1 L_end")
    srd(16, 24, 2560)
    e("  v_mul_u32_u24 v14, 2560, v3")
    e("  v_lshl_add_u32 v14, v4, 4, v14")
    e(f"  s_mul_i32 s14, s{S_B}, 0x{BSB:x}")
    e(f"  s_lshl_b32 s15, s{S_H}, 7")
    e("  s_add_u32 s14, s14, s15")
    e(f"  s_add_u32 s32, s14, 0x{BS:x}")
    for i in range(1, 12):
        e(f"  s_add_u32 s{32+i}, s{31+i}, 20480")
    e("  v_bfe_u32 v5, v2, 4, 1")
    e("  v_lshrrev_b32 v6, 5, v2")
    e("  v_lshl_add_u32 v5, v5, 1, v6")
    e("  v_lshl_add_u32 v5, v4, 2, v5")
    e("  v_lshlrev_b32 v5, 1, v5")
    e(f"  s_mul_i32 s14, s{S_B}, 1280")
    e(f"  s_lshl_b32 s15, s{S_H}, 6")
    e("  s_add_u32 s72, s14, s15")
    e("  s_mov_b32 s76, 0x0c04000c")
    e("  s_mov_b32 s77, 0x0402010c")
    if nred > 1:
        e("  s_cmp_eq_u32 s3, 8")
        e("  s_cbranch_scc1 L_red0")
        wait_flag(F_GATE, 1, sleep=4)
        e("  s_branch L_gate_done2")
        e("L_red0:")
    wait_flag(F_PP, 1, sleep=8)
    if touch_out:
        e(f"  buffer_load_ushort v20, v5, {ST}, s72 offen")
    e("L_gate:")
    e(f"  buffer_load_dwordx4 v[16:19], v14, {WS}, s32 offen sc1")
    e("  s_waitcnt vmcnt(0)")
    e("  v_cmp_eq_u32 vcc, s30, v19")
    e("  s_cmp_lg_u64 vcc, 0")
    e("  s_cbranch_scc1 L_gate_done")
    e(f"  s_sub_u32 s{S_BUD}, s{S_BUD}, 16")
    e("  s_cbranch_scc1 L_end")
    e(f"  s_sleep {gate_sleep}")
    e("  s_branch L_gate")
    e("L_gate_done:")
    if nred > 1:
        set_flag(F_GATE)
        e("L_gate_done2:")
        for w in range(1, nred):
            e(f"  s_cmp_lt_u32 s3, {8 + w}")
            e("  s_cbranch_scc1 L_stag")
            e(f"  s_sleep {rstag}")
        e("L_stag:")
    stamp(12)
    poll([16 + 4 * i for i in range(12)], 14, [32 + i for i in range(12)], [44 + 2 * i for i in range(12)])
    if nred > 1:
        inc_flag_rtn(F_DONE)
        e(f"  s_cmp_lg_u32 s{S_T}, 0")
        e("  s_cbranch_scc1 L_end")
    stamp(10)
    for i in range(12):
        q = 16 + 4 * i
        e(f"  v_perm_b32 v{q+3}, v{q+1}, v{q}, s76")
    for i in range(12):
        q = 16 + 4 * i
        e(f"  v_perm_b32 v{q+3}, v{q+2}, v{q+3}, s77")
    def pk(a, b_):
        e(f"  v_pk_add_f32 v[{a}:{a+1}], v[{a}:{a+1}], v[{b_}:{b_+1}]")
        e(f"  v_pk_add_f32 v[{a+2}:{a+3}], v[{a+2}:{a+3}], v[{b_+2}:{b_+3}]")
    for i in range(6): pk(16 + 8 * i, 20 + 8 * i)
    for i in range(3): pk(16 + 16 * i, 24 + 16 * i)
    pk(16, 32); pk(16, 48)
    e("  s_nop 1")
    e("  v_permlane32_swap_b32 v16, v17")
    e("  v_permlane32_swap_b32 v18, v19")
    e("  s_nop 1")
    e("  v_add_f32 v16, v16, v17")
    e("  v_add_f32 v18, v18, v19")
    e("  s_nop 1")
    e("  v_permlane16_swap_b32 v16, v18")
    e("  s_nop 1")
    e("  v_add_f32 v16, v16, v18")
    e("  s_nop 1")
    e("  v_add_f32_dpp v16, v16, v16 row_ror:8 row_mask:0xf bank_mask:0xf")
    e("  v_cvt_pk_bf16_f32 v16, v16, v16")
    e("  s_mov_b32 exec_lo, 0x00ff00ff")
    e("  s_mov_b32 exec_hi, 0x00ff00ff")
    e(f"  buffer_store_short v16, v5, {ST}, s72 offen")
    e("  s_mov_b64 exec, -1")
    stamp(11)
    if dbgt: dbgmax(0, ((24, 0), (24+128+64+3, 8)))
    e(f"  s_cmp_lg_u32 s{S_H}, 0")
    e("  s_cbranch_scc1 L_end")
    e("  v_mov_b32 v20, s30")
    e(f"  s_lshl_b32 s14, s{S_B}, 8")
    e("  s_mov_b64 exec, 1")
    e(f"  buffer_store_dword v20, v10, {WS}, s14 offen sc1")
    L = L_keep; e = L.append
    e("L_end:")
    if stamps:
        e("  s_mov_b64 exec, -1")
        e("  v_and_b32 v8, 63, v0")
        e("  v_lshlrev_b32 v8, 2, v8")
        e("  v_cmp_ne_u32 vcc, 0, v9")
        if ep2:
            e(f"  s_lshr_b32 s31, s{S_BH}, 3")
            e("  s_lshl_b32 s31, s31, 2")
            e(f"  s_or_b32 s31, s31, s{S_J}")
            e("  s_lshl_b32 s31, s31, 3")
            e(f"  s_and_b32 s15, s{S_BH}, 7")
            e("  s_or_b32 s31, s31, s15")
            e("  s_lshl_b32 s31, s31, 7")
        else: e("  s_lshl_b32 s31, s2, 7")
        e("  s_add_u32 s31, s31, 0x8000000")
        e("  s_mov_b64 exec, vcc")
        e("  s_cbranch_execz L_end0")
        e(f"  buffer_store_dword v9, v8, {WS}, s31 offen")
    e("L_end0:")
    e("  s_endpgm")
    e('.section .rodata,"a"')
    e(".p2align 6")
    e(f".amdhsa_kernel {KN}_kernel")
    nv = 128
    e(f"  .amdhsa_next_free_vgpr {nv}")
    e("  .amdhsa_next_free_sgpr 102")
    e(f"  .amdhsa_accum_offset {nv}")
    e("  .amdhsa_group_segment_fixed_size 0")
    e("  .amdhsa_kernarg_size 104")
    e("  .amdhsa_user_sgpr_count 2")
    e("  .amdhsa_user_sgpr_kernarg_segment_ptr 1")
    e("  .amdhsa_system_sgpr_workgroup_id_x 1")
    e(".end_amdhsa_kernel")
    return "\n".join(L) + "\n"

if __name__ == "__main__":
    W = "work/"
    import json
    variants = json.loads(sys.argv[1]) if len(sys.argv) > 1 else {"v10": {}}
    for nm, kw in variants.items():
        open(W + nm + ".s", "w").write(gen(**kw))
        open(W + nm + "_st.s", "w").write(gen(stamps=True, **kw))
```

```python
import sys, struct
KN = "concat_heads__sliding_block_cached__sliding_block_cached__decode"

def f32hex(x):
    return "0x%08x" % struct.unpack("<I", struct.pack("<f", x))[0]

F_WQ, F_KI, F_VI, F_QG, F_Q, F_P, F_PV, F_TK, MASK, F_O, F_WQA, F_X, SIG, F_SLOW, F_PP, F_B, F_DONE, F_GATE = 0, 4, 8, 12, 16, 20, 24, 28, 32, 36, 40, 44, 48, 64, 68, 72, 76, 80
ML, OL, QL, QG, QP = 256, 320, 512, 1024, 4096
OWNG = 3328
OP = QP
XP = QG
PL, BL = 10240, 8192
LDS_BYTES = 10752
HB, QD, QF, PD, PF, CB = 0x1000, 0x0, 0xc00, 0x1000, 0x2000, 0x3000
QSS, PSS, BS, BSB = 0x201000, 0x241000, 0x281000, 0x3C000
AC, ACB = 0x400000, 0x80000
SD, SDB = 0x800000, 0x80000
F_MH = 84
AFL, ACO = 0x2800, 0x7000
CNT1, BIG1 = 0x02000000, 0x00040000
TAGC = 0x9E3779B9
EPH, EPC = 0x900000, 0x85EBCA6A
SCALE = f32hex(192 ** -0.5)
LOG2E = f32hex(1.4426950408889634)
S_BH, S_B, S_H, S_J, S_BUD, S_T = 96, 97, 98, 99, 100, 101

def gen(stamps=False, nt="nt", gate_sleep=8, wv=99, wwo=99, wkl=99, prio=True, touch_out=True,
        slq=[1]*6+[3]*4+[6]*3+[12]*3, slp=[1]*32, vgate="ki", k_hold=99, k_hold2=99, wqa_at=4, cpf=0, skel=0, sq=0, sp=0, ssc='', w20=1, kpat=0, nogate=0, wk=99, minsleep=0, noslow=0, rs=(0,2), tmode=0, twave=10, dbgt=0, nred=1, rstag=6, bdir=0, prof0=0, tlb=0, nt_lines=20, fd=0, mminfo=0, qmerge=1, pf4=1, ncopy=3, tskip=0, tj3=0, bat=0, asc='', als=128, tout=1, ebias=0, dly=None, afm=0, fw=3, aun=128, awarm=0, osc='', wbl=0, wbs=0, ep2=0, fastp=0, wnt=0, ent=0, tnt=0, rnt=0, cnt_=0, snt=0, hs=0x8000, rba=0, dacf=0, ncp=4, chk_at=0, csl=8, dtail=0, now1=0, doc=0, dq=0, rq=0, rqg=0, h2=0, qgthr=4, wqp='nt', wqr='nt', rqw=99, q9=0, qd=0, qtouch=1, qsl=1):
    L = []
    e = L.append
    QSS, PSS = (0x201000, 0x241000) if hs == 0x8000 else (0x300000, 0x340000)
    assert HB + 64 * hs <= 0x300000 and hs % 256 == 0
    RBA = 0x3F0000
    N1 = "nt" if wnt & 1 else ""; N2 = "nt" if wnt & 2 else ""; NE = {0: "sc1", 1: "sc1 nt", 2: "nt", 3: ""}[ent]; NS = "nt" if snt else ""; NT_ = "nt" if tnt else ""; NR = "nt" if rnt else ""; NC = "nt" if cnt_ else ""
    if doc:
        for l in """Waves 0-3: 40 rows of wq each (partial q), later the wo rows of the workgroup; waves 4-7: 64 keys of K each;
waves 8-15: 128 keys x 64 dims of V each (workgroups j<3 of a head; j==3 only takes its share of wq and K).
Partial q vectors and scores go from workgroup to workgroup through d_ws as 16-B granules that carry the tag of
this launch (two epoch words + constant; the words are advanced once every reader of the tag is done).
Copies seen through the same L2 are fetched first, write-through copies are the fallback for any other placement.
The 96 partial sums of every output element meet in a 64-bit accumulator (arrival count + fixed-point value, cleared
and flagged by this launch); the last arrival rounds and stores.  The fixed-point unit comes from a sample of V and wo;
partial sums outside its range travel as tagged floats in side slots instead.""".split("\n"): e("; " + l)
    QP2, F_K1, F_RI = 10752, 88, 92
    e(f"; @launch grid=(256,1,1) block=(1024,1,1) lds={QP2 + 24*768 if rq else LDS_BYTES}")
    e('.amdgcn_target "amdgcn-amd-amdhsa--gfx950"')
    e(".text")
    e(f".globl {KN}_kernel")
    e(".p2align 8")
    e(f".type {KN}_kernel,@function")
    e(f"{KN}_kernel:")
    if stamps or dbgt: e("  s_memrealtime s[94:95]")
    def kargs():
        e("  s_load_dwordx16 s[4:19], s[0:1], 0")
        e("  s_load_dwordx8 s[20:27], s[0:1], 64")
        e("  s_load_dwordx2 s[28:29], s[0:1], 96")
    if fastp: kargs()
    e("  s_cmp_ge_u32 s2, 256")
    e("  s_cbranch_scc1 L_end0")
    if cpf:
        e("  s_getpc_b64 s[32:33]")
        e("L_pc:")
        e("  v_lshlrev_b32 v5, 7, v0")
        e("  v_subrev_u32 v5, 0x12000, v5      ; (tid - 576) * 128")
        e("  v_cmp_gt_u32 vcc, L_end0-L_pc, v5")
        e("  s_bfe_u32 s34, s2, 0x20003")
        e("  s_cmp_lg_u32 s34, 3")
        e("  s_cbranch_scc1 L_nopf")
        e("  s_and_b64 exec, exec, vcc")
        e("  s_cbranch_execz L_nopf1")
        e(f"  global_load_dword v6, v5, s[32:33] {NC}")
        e("L_nopf1:")
        e("  s_mov_b64 exec, -1")
        e("L_nopf:")
    if not fastp: kargs()
    e("  v_lshrrev_b32 v1, 6, v0")
    e("  v_and_b32 v2, 63, v0              ; lane")
    e("  v_readfirstlane_b32 s3, v1")
    e(f"  s_and_b32 s{S_BH}, s2, 7")
    e(f"  s_lshr_b32 s{S_J}, s2, 5")
    e(f"  s_lshl_b32 s{S_J}, s{S_J}, 3")
    e(f"  s_or_b32 s{S_BH}, s{S_BH}, s{S_J}            ; bh")
    e(f"  s_lshr_b32 s{S_J}, s2, 3")
    e(f"  s_and_b32 s{S_J}, s{S_J}, 3             ; j")
    e(f"  s_lshr_b32 s{S_B}, s{S_BH}, 5            ; b")
    e(f"  s_and_b32 s{S_H}, s{S_BH}, 31            ; h")
    e(f"  s_mov_b32 s{S_BUD}, 0x200000")
    e("  v_mov_b32 v10, 0")
    if stamps: e("  v_mov_b32 v9, 0")
    e("  v_mov_b32 v11, 1")
    e("  v_lshlrev_b32 v12, 2, v2          ; lane*4")
    e("  ds_write_b32 v12, v10")
    e("  v_lshrrev_b32 v3, 3, v2           ; rho")
    e("  v_and_b32 v4, 7, v2               ; sub")
    e("  v_lshlrev_b32 v1, 6, v2           ; lane*64")
    e(f"  s_lshl_b32 s31, s{S_B}, 8")
    if hs == 0x8000: e(f"  s_lshl_b32 s0, s{S_BH}, 15")
    else: e(f"  s_mul_i32 s0, s{S_BH}, {hs}")
    if ep2: e(f"  s_add_u32 s1, s31, 0x{EPH:x}")
    def srd(d, p, n):
        e(f"  s_mov_b32 s{d}, s{p}"); e(f"  s_and_b32 s{d+1}, s{p+1}, 0xffff")
        e(f"  s_mov_b32 s{d+2}, {n}"); e(f"  s_mov_b32 s{d+3}, 0x20000")
    ST = "s[16:19]"; WS = "s[20:23]"
    def post(wait=True):
        e(f"  s_cmp_lg_u32 s{S_B}, 0")
        if wait:
            if prof0: e("  s_memrealtime s[88:89]")
            e("  s_waitcnt lgkmcnt(0)")
            if prof0: e("  s_memrealtime s[92:93]")
        e("  s_load_dword s30, s[28:29], s31")
        if ep2: e("  s_load_dword s2, s[28:29], s1")
        e("  s_cselect_b64 s[4:5], s[14:15], s[4:5]     ; x")
        if wait:
            e("  s_cselect_b64 s[6:7], s[16:17], s[6:7]     ; k")
            e("  s_cselect_b64 s[8:9], s[18:19], s[8:9]     ; v")
            e("  s_cselect_b64 s[10:11], s[20:21], s[10:11] ; wq")
        e("  s_cselect_b64 s[12:13], s[22:23], s[12:13] ; wo")
        e(f"  s_add_u32 s31, s0, 0x{HB:x}")
        srd(20, 28, 268435456)
    if not fastp: post()
    def get_tag():
        e("  s_waitcnt lgkmcnt(0)")
        e(f"  s_add_u32 s30, s30, 0x{TAGC:08x}")
        if ep2: e("  s_add_u32 s30, s30, s2")
    def put(idx, sr):
        e(f"  v_writelane_b32 v9, s{sr}, {2*idx}")
        e(f"  v_writelane_b32 v9, s{sr+1}, {2*idx+1}")
    cnt = [0]
    def newlab(p):
        cnt[0] += 1
        return f"L_{p}{cnt[0]}"
    def dbgmax(slot, wgs=((100, 0), (5, 8)), src=None):
        for wg, off in wgs:
            lb = newlab("dbg")
            e(f"  s_cmp_lg_u32 s2, {wg}")
            e(f"  s_cbranch_scc1 {lb}")
            if src is None:
                e("  s_memrealtime vcc")
                e("  s_waitcnt lgkmcnt(0)")
                e("  v_mov_b32 v13, vcc_lo")
            else: e(f"  v_mov_b32 v13, {src}")
            e(f"  v_mov_b32 v8, {4*(slot+off)}")
            e("  s_mov_b64 exec, 1")
            e("  global_store_dword v8, v13, s[26:27]")
            e("  s_mov_b64 exec, -1")
            e(f"{lb}:")
    DBG = {2: 4, 14: 5, 7: 6, 15: 3, 3: 7}
    def stamp(idx, wave=None):
        if dbgt and idx in DBG and wave is None: dbgmax(DBG[idx])
        if not stamps: return
        if dacf and idx in (5, 9) and wave != -2: return
        if dtail and idx not in (7, 11): return
        if dq and idx in (1, 5, 6, 13, 10) and wave != -3 and wave != -4: return
        if wave == -3: wave = dq - 1
        if wave == -4: wave = None
        if wave == -2: wave = None
        if prof0 and (idx in (5, 11, 6, 1, 13, 3, 4, 7, 8, 9, 10) and wave != -1): return
        if wave == -1: wave = prof0 - 1
        lb = newlab("st")
        if wave is not None:
            e(f"  s_cmp_lg_u32 s3, {wave}")
            e(f"  s_cbranch_scc1 {lb}")
        e(f"  s_memrealtime s[26:27]")
        e("  s_waitcnt lgkmcnt(0)")
        put(idx, 26)
        e(f"{lb}:")
    def dstamp(base):
        if not (stamps and dtail): return
        e("  s_memrealtime s[26:27]")
        e(f"  s_lshl_b32 s62, s14, 1")
        e(f"  s_add_u32 m0, s62, {2*base}")
        e("  s_waitcnt lgkmcnt(0)")
        e("  v_writelane_b32 v9, s26, m0")
        e("  s_add_u32 m0, m0, 1")
        e("  v_writelane_b32 v9, s27, m0")
    def wait_flag(off, val, sleep=1, va=10):
        lb = newlab("spin")
        sleep = max(sleep, minsleep)
        e(f"{lb}:")
        e(f"  ds_read_b32 v13, v{va} offset:{off}")
        e("  s_waitcnt lgkmcnt(0)")
        e(f"  v_readfirstlane_b32 s{S_T}, v13")
        e(f"  s_cmp_ge_u32 s{S_T}, {val}")
        e(f"  s_cbranch_scc1 {lb}_done")
        e(f"  s_sub_u32 s{S_BUD}, s{S_BUD}, 1")
        e("  s_cbranch_scc1 L_end")
        if sleep: e(f"  s_sleep {sleep}")
        e(f"  s_branch {lb}")
        e(f"{lb}_done:")
    def inc_flag(off):
        e("  s_mov_b64 exec, 1")
        e(f"  ds_add_u32 v10, v11 offset:{off}")
        e("  s_mov_b64 exec, -1")
    def inc_flag_rtn(off):
        e("  s_mov_b64 exec, 1")
        e(f"  ds_add_rtn_u32 v13, v10, v11 offset:{off}")
        e("  s_mov_b64 exec, -1")
        e("  s_waitcnt lgkmcnt(0)")
        e(f"  v_readfirstlane_b32 s{S_T}, v13")
    def set_flag(off):
        e("  s_mov_b64 exec, 1")
        e(f"  ds_write_b32 v10, v11 offset:{off}")
        e("  s_mov_b64 exec, -1")
    def set_exec(n):
        if n >= 64: e("  s_mov_b64 exec, -1")
        elif n > 32:
            e("  s_mov_b32 exec_lo, -1"); e(f"  s_mov_b32 exec_hi, 0x{(1 << (n-32)) - 1:x}")
        else:
            e(f"  s_mov_b32 exec_lo, 0x{(1 << n) - 1:x}"); e("  s_mov_b32 exec_hi, 0")
    def setprio(p):
        if prio: e(f"  s_setprio {p}")
    def make_sel(pos, base, t0):
        a, b_, c, z = t0, t0+1, t0+2, t0+3
        e(f"  v_and_b32 v{a}, 1, v{pos}")
        e(f"  v_cmp_eq_u32 vcc, 1, v{a}")
        e(f"  v_mov_b32 v{b_}, 0x0c0c0100")
        e(f"  v_mov_b32 v{c}, 0x01000c0c")
        e(f"  v_mov_b32 v{z}, 0x0c0c0c0c")
        e(f"  v_cndmask_b32 v{b_}, v{b_}, v{c}, vcc")
        e(f"  v_mov_b32 v{c}, 0x0c0c0302")
        e(f"  v_mov_b32 v{a}, 0x03020c0c")
        e(f"  v_cndmask_b32 v{c}, v{c}, v{a}, vcc")
        e(f"  v_lshrrev_b32 v{a}, 1, v{pos}")
        for r in range(4):
            e(f"  v_cmp_eq_u32 vcc, {r}, v{a}")
            e("  s_nop 1")
            e(f"  v_cndmask_b32 v{base+2*r}, v{z}, v{b_}, vcc")
            e(f"  v_cndmask_b32 v{base+2*r+1}, v{z}, v{c}, vcc")
    def mfma_chain(n, src, selb, dbase, acc, A0, extra=()):
        def perms(s):
            A = A0 + 4 * (s & 1)
            for rr in range(4):
                e(f"  v_perm_b32 v{A+rr}, v{src+s//2}, v{src+s//2}, v{selb+2*rr+(s&1)}")
        perms(0)
        for s in range(n):
            if s + 1 < n: perms(s + 1)
            else: e("  s_nop 0")
            if s < len(extra): e(extra[s])
            e(f"  s_waitcnt vmcnt({n-1-s})")
            A = A0 + 4 * (s & 1)
            d = dbase + 4 * s
            c = "0" if s == 0 else f"v[{acc}:{acc+3}]"
            e(f"  v_mfma_f32_16x16x32_bf16 v[{acc}:{acc+3}], v[{A}:{A+3}], v[{d}:{d+3}], {c}")
    def poll(regs, voff, soffs, ms):
        lb = newlab("poll")
        for rq, so in zip(regs, soffs):
            e(f"  buffer_load_dwordx4 v[{rq}:{rq+3}], v{voff}, {WS}, s{so} offen sc1")
        e(f"{lb}:")
        e("  s_waitcnt vmcnt(0)")
        for i, rq in enumerate(regs):
            e(f"  v_cmp_ne_u32 s[{ms[i]}:{ms[i]+1}], s30, v{rq+3}")
        e(f"  s_or_b64 s[70:71], s[{ms[0]}:{ms[0]+1}], s[{ms[1]}:{ms[1]+1}]")
        for i in range(2, len(regs)):
            e(f"  s_or_b64 s[70:71], s[70:71], s[{ms[i]}:{ms[i]+1}]")
        e("  s_cmp_eq_u64 s[70:71], 0")
        e(f"  s_cbranch_scc1 {lb}_done")
        e(f"  s_sub_u32 s{S_BUD}, s{S_BUD}, 16")
        e("  s_cbranch_scc1 L_end")
        if nred > 1:
            e(f"  ds_read_b32 v13, v10 offset:{F_DONE}")
            e("  s_waitcnt lgkmcnt(0)")
            e(f"  v_readfirstlane_b32 s{S_T}, v13")
            e(f"  s_cmp_lg_u32 s{S_T}, 0")
            e("  s_cbranch_scc1 L_end")
        for i, (rq, so) in enumerate(zip(regs, soffs)):
            e(f"  s_mov_b64 exec, s[{ms[i]}:{ms[i]+1}]")
            e(f"  s_cbranch_execz {lb}_s{i}")
            e(f"  buffer_load_dwordx4 v[{rq}:{rq+3}], v{voff}, {WS}, s{so} offen sc1")
            e(f"{lb}_s{i}:")
        e("  s_mov_b64 exec, -1")
        e(f"  s_branch {lb}")
        e(f"{lb}_done:")
    def flagtag(d):
        e(f"  s_getreg_b32 s{d}, hwreg(HW_REG_XCC_ID, 0, 4)")
        e(f"  s_add_u32 s{d}, s{d}, s30")
        e(f"  s_add_u32 s{d}, s{d}, 1")
    def block_fetch(lb, vt, sidx=5):
        e(f"{lb}_fast:")
        e("  s_mov_b32 s8, s0")
        for c in range(ncopy):
            if c:
                e(f"  s_add_u32 s8, s8, 0x{CB if c == 1 else 0x2000:x}")
                if rs[c-1]: e(f"  s_sleep {rs[c-1]}")
            for i in range(4):
                e(f"  s_load_dwordx16 s[{32+16*i}:{47+16*i}], s[28:29], s8 offset:{64*i}")
            e(f"  v_mov_b32 v{vt}, s30")
            e("  s_waitcnt lgkmcnt(0)")
            for g in range(16):
                e(f"  v_writelane_b32 v{vt}, s{35+4*g}, {g}")
            e(f"  v_cmp_ne_u32 vcc, s30, v{vt}")
            e("  s_cmp_eq_u64 vcc, 0")
            e(f"  s_cbranch_scc1 {lb}_ok")
        e(f"{lb}_slow:")
        stamp(sidx)
        e(f"  v_lshlrev_b32 v{vt}, 4, v2")
        e(f"  s_sub_u32 s{S_BUD}, s{S_BUD}, 64")
        e("  s_cbranch_scc1 L_end")
        set_exec(16)
        e(f"  buffer_load_dwordx4 v[120:123], v{vt}, {WS}, s0 offen sc1")
        e(f"  buffer_load_dwordx4 v[124:127], v{vt}, {WS}, s1 offen sc1")
        e("  s_waitcnt vmcnt(0)")
        e("  v_cmp_eq_u32 vcc, s30, v127")
        for d in range(4):
            e(f"  v_cndmask_b32 v{120+d}, v{120+d}, v{124+d}, vcc")
        e("  v_cmp_ne_u32 vcc, s30, v123")
        e("  s_mov_b64 exec, -1")
        e("  s_cmp_lg_u64 vcc, 0")
        e(f"  s_cbranch_scc1 {lb}_slow")
        for g in range(16):
            for d in range(3):
                e(f"  v_readlane_b32 s{32+4*g+d}, v{120+d}, {g}")
        e("  s_nop 3")
        e(f"{lb}_ok:")
    def paced(n, w, loadf, flag=F_PP, thr=1):
        lb = newlab("pc")
        for i in range(n):
            if i >= w:
                e(f"  ds_read_b32 v13, v10 offset:{flag}")
                e("  s_waitcnt lgkmcnt(0)")
                e(f"  v_readfirstlane_b32 s{S_T}, v13")
                e(f"  s_cmp_ge_u32 s{S_T}, {thr}")
                e(f"  s_cbranch_scc1 {lb}_f{i}")
                e(f"  s_waitcnt vmcnt({w-1})")
            loadf(i)
        if n > w:
            e(f"  s_branch {lb}_done")
            for i in range(w, n):
                e(f"{lb}_f{i}:")
                loadf(i)
            e(f"{lb}_done:")
    def touch(w):
        lb = newlab("tc")
        e(f"  s_cmp_lg_u32 s3, {w}")
        e(f"  s_cbranch_scc1 {lb}")
        if tj3:
            e(f"  s_cmp_lg_u32 s{S_J}, 3")
            e(f"  s_cbranch_scc1 {lb}")
            e("  s_mov_b32 s14, 0")
        else: e(f"  s_mul_i32 s14, s{S_J}, {nt_lines*128}")
        if tskip: e(f"  s_add_u32 s14, s14, {tskip}")
        e("  s_add_u32 s14, s14, s31")
        e("  v_lshlrev_b32 v126, 7, v2")
        set_exec(nt_lines)
        e(f"  buffer_load_dword v127, v126, {WS}, s14 offen {NT_}")
        e("  s_mov_b64 exec, -1")
        if tlb:
            e(f"  s_mul_i32 s14, s{S_H}, 1572864")
            e("  s_add_u32 s14, s14, 1179648")
            e(f"  s_lshl_b32 s15, s{S_J}, 7")
            e("  s_add_u32 s14, s14, s15")
            e(f"  v_mul_u32_u24 v126, {393216 // tlb}, v2")
            e("  v_add_u32 v126, s14, v126")
            e(f"  s_mul_i32 s14, s{S_H}, 192")
            e(f"  s_lshl_b32 s15, s{S_J}, 6")
            e("  s_add_u32 s14, s14, s15")
            e("  s_min_u32 s14, s14, 6080")
            e("  s_mul_i32 s14, s14, 1280")
            e(f"  v_mul_u32_u24 v124, {81920 // min(tlb, 16)}, v2")
            e("  v_add_u32 v124, s14, v124")
            set_exec(tlb)
            e("  global_load_dword v125, v126, s[8:9]")
            set_exec(min(tlb, 16))
            e("  global_load_dword v123, v124, s[12:13]")
            e("  s_mov_b64 exec, -1")
        e(f"{lb}:")

    def bat_setup():
        t = []
        t.append(f"  s_mul_i32 s45, s{S_B}, {5*(1024//aun)*als if afm >= 9 else ACB}|  s_mul_i32 s48, s14, {(1024//aun)*als}|  s_add_u32 s45, s45, s48")
        t.append(f"  s_add_u32 s45, s45, 0x{AC + 4096:x}|  s_add_u32 s48, s45, {(512//aun)*als}")
        t.append(f"  s_mov_b32 s46, 0|  s_mov_b32 s54, 0x{CNT1:x}|  s_sub_u32 s56, s54, s47|  s_sub_u32 s57, s47, 0x20000")
        t.append(f"  s_lshr_b32 s55, s47, 20|  s_sub_i32 s55, s55, 906|  s_max_i32 s55, s55, 0|  s_min_i32 s55, s55, 255|  s_lshl_b32 s55, s55, 23")
        t.append(f"  s_mul_i32 s49, s{S_B}, 1280|  s_lshl_b32 s50, s14, 8|  s_add_u32 s49, s49, s50")
        lg = {64: 3, 128: 4}[aun]
        t.append(f"  v_lshrrev_b32 v120, {lg}, v2|  v_and_b32 v121, {(1 << lg) - 1}, v2")
        t.append(f"  v_mul_u32_u24 v120, {als}, v120|  v_and_b32 v123, 15, v2")
        t.append(f"  v_lshl_add_u32 v120, v121, 3, v120|  v_bfe_u32 v121, v2, 4, 1|  v_lshlrev_b32 v123, 4, v123")
        t.append(f"  v_lshl_add_u32 v123, v121, 3, v123|  v_lshrrev_b32 v122, 5, v2")
        t.append(f"  v_lshl_add_u32 v121, v122, 2, v123")
        t.append(f"  s_mov_b32 s16, s24|  s_and_b32 s17, s25, 0xffff|  s_mov_b32 s18, 2560|  s_mov_b32 s19, 0x20000")
        return "\n".join(x.replace("|", "\x01") for x in t).replace("\x01", "\x02")
    if fastp:
        e("  s_cmp_ge_u32 s3, 4")
        e("  s_cbranch_scc1 L_nw")
    else:
        e("  s_cmp_ge_u32 s3, 8")
        e("  s_cbranch_scc1 L_v")
        e("  s_cmp_ge_u32 s3, 4")
        e("  s_cbranch_scc1 L_k")
    if fastp:
        so, rb, SW = 34, 35, "s[36:39]"
        if twave == 0:
            e(f"  s_mul_i32 s33, s{S_J}, {nt_lines*128}")
            e("  s_add_u32 s33, s33, s0")
            e(f"  s_add_u32 s33, s33, {HB + tskip}")
            e("  v_lshl_add_u32 v126, v2, 7, s33")
            if qd and qtouch:
                e(f"  s_mul_i32 s33, s{S_J}, {qd*768}")
                e("  s_add_u32 s33, s33, s0")
                e(f"  s_add_u32 s33, s33, {HB + 0x7000 - nt_lines*128}")
                e("  v_lshl_add_u32 v125, v2, 7, s33")
                e(f"  v_cmp_gt_u32 vcc, {nt_lines}, v2")
                e("  s_nop 1")
                e("  v_cndmask_b32 v126, v125, v126, vcc")
        e("  s_mov_b32 s38, 7864320")
        e("  s_mov_b32 s39, 0x20000")
    else:
        so, rb, SW = 14, 15, ST
        if twave == 0: touch(0)
        srd(16, 10, 7864320)
    e("  v_mul_u32_u24 v5, 12288, v3")
    e("  v_lshl_add_u32 v5, v4, 4, v5")
    e(f"  s_lshl_b32 s{rb}, s{S_J}, 2")
    e(f"  s_add_u32 s{rb}, s{rb}, s3")
    e(f"  s_mul_i32 s{so}, s{rb}, 491520")
    e(f"  s_mul_i32 s32, s{S_H}, 384")
    e(f"  s_add_u32 s{so}, s{so}, s32")
    if fastp:
        if twave == 0:
            e("  s_cmp_eq_u32 s3, 0")
            ntl = nt_lines + (6*qd if qd and qtouch else 0)
            e(f"  s_cselect_b32 exec_lo, 0x{(1 << min(ntl, 32)) - 1:x}, 0")
            if ntl > 32: e(f"  s_cselect_b32 exec_hi, 0x{(1 << (ntl - 32)) - 1:x}, 0")
            else: e("  s_mov_b32 exec_hi, 0")
        e(f"  s_cmp_lg_u32 s{S_B}, 0")
        if prof0: e("  s_memrealtime s[88:89]")
        e("  s_waitcnt lgkmcnt(0)")
        if prof0: e("  s_memrealtime s[92:93]")
        if twave == 0:
            e(f"  global_load_dword v127, v126, s[28:29] {NT_}")
            e("  s_mov_b64 exec, -1")
        e("  s_cselect_b64 s[36:37], s[20:21], s[10:11] ; wq")
        e("  s_and_b32 s37, s37, 0xffff")
    r = 16
    if prof0: e("  s_memrealtime s[60:61]")
    for rg in range(5):
        for t in range(3):
            e(f"  buffer_load_dwordx4 v[{r}:{r+3}], v5, {SW}, s{so} offen offset:{t*128} {wqp}")
            if prof0 and rg == 0 and t == 0: e("  s_memrealtime s[62:63]")
            if prof0 and rg == 0 and t == 2: e("  s_memrealtime s[64:65]")
            if prof0 and rg == 2 and t == 2: e("  s_memrealtime s[66:67]")
            r += 4
        if rg < 4: e(f"  s_add_u32 s{so}, s{so}, 98304")
    if fastp: post(False)
    if prof0: e("  s_memrealtime s[90:91]")
    e("  s_barrier")
    if prof0:
        e("  s_memrealtime s[68:69]")
        e("  s_waitcnt lgkmcnt(0)")
        e(f"  s_cmp_lg_u32 s3, {prof0-1}"); e("  s_cbranch_scc1 L_pr0"); put(5, 92); put(11, 90); put(6, 88); put(3, 60); put(4, 62); put(7, 64); put(8, 66); put(9, 68); put(10, 94); e("L_pr0:")
    if dbgt:
        e("  s_cmp_lg_u32 s3, 0"); e("  s_cbranch_scc1 L_dbg0")
        dbgmax(1, ((0, 0), (100, 1), (5, 9), (255, 8)), "s94")
        e("L_dbg0:")
    e(f"  s_mul_i32 s15, s{rb}, 80")
    if stamps:
        lb = newlab("st")
        e("  s_cmp_lg_u32 s3, 0"); e(f"  s_cbranch_scc1 {lb}"); put(0, 94); e(f"{lb}:")
    e("  s_load_dwordx16 s[32:47], s[4:5], s15")
    e("  s_load_dwordx4 s[48:51], s[4:5], s15 offset:64")
    make_sel(4, 84, 92)
    e("  v_and_b32 v92, 1, v3")
    e("  v_cmp_eq_u32 vcc, 1, v92")
    e("  v_lshrrev_b32 v7, 5, v2")
    e("  v_mul_u32_u24 v7, 768, v7")
    for rr in range(4):
        e(f"  v_cndmask_b32 v{84+2*rr}, v{84+2*rr}, v{85+2*rr}, vcc")
    e("  v_lshl_add_u32 v7, v4, 5, v7")
    e("  v_bfe_u32 v14, v2, 4, 1")
    e("  v_lshl_add_u32 v7, v14, 4, v7")
    e("  s_mul_i32 s14, s3, 1536")
    e("  v_add_u32 v7, s14, v7")
    e("  v_lshlrev_b32 v14, 4, v2          ; lane*16")
    e(f"  s_mul_i32 s4, s{S_J}, 0x300")
    e("  s_add_u32 s4, s4, s31")
    e(f"  s_lshl_b32 s5, s{S_J}, 2")
    e("  s_add_u32 s5, s5, s31")
    e(f"  s_add_u32 s5, s5, 0x{QF:x}")
    e("  s_mov_b32 s7, 0x07060501")
    e("  s_mov_b32 s8, 0x07060502")
    e("  s_mov_b32 s9, 0x07060503")
    if qmerge:
        assert len(slq) == 16
        e(f"  s_mul_i32 s14, s{S_J}, 0x300-16")
        e(f"  s_sub_u32 s14, {QF - 48*64}, s14")
        e("  v_add_u32 v8, s14, v1")
        e("  v_cmp_gt_u32 vcc, 48, v2")
        e("  s_nop 1")
        e("  v_cndmask_b32 v8, v8, v14, vcc")
    get_tag()
    for d in range(4):
        if d < 2:
            e(f"  s_mov_b32 exec_lo, 0x{0xffff << (16*d):x}"); e("  s_mov_b32 exec_hi, 0")
        else:
            e("  s_mov_b32 exec_lo, 0"); e(f"  s_mov_b32 exec_hi, 0x{0xffff << (16*(d-2)):x}")
        for rg in range(5):
            e(f"  v_mov_b32 v{76+rg}, s{32+4*rg+d}")
    e("  s_mov_b64 exec, -1")
    for rg in range(5):
        A = 92 + 4 * (rg & 1)
        for rr in range(4):
            e(f"  v_perm_b32 v{A+rr}, v{76+rg}, v{76+rg}, v{84+2*rr}")
        e(f"  s_waitcnt vmcnt({12-3*rg})")
        if prof0 and rg == 0: stamp(1, -1)
        if prof0 and rg == 4: stamp(13, -1)
        if rg == wqa_at and k_hold < 24: inc_flag(F_WQA)
        else: e("  s_nop 0")
        for t in range(3):
            d = 16 + 12 * rg + 4 * t
            acc = 100 + 4 * t
            c = "0" if rg == 0 else f"v[{acc}:{acc+3}]"
            e(f"  v_mfma_f32_16x16x32_bf16 v[{acc}:{acc+3}], v[{A}:{A+3}], v[{d}:{d+3}], {c}")
    setprio(3)
    e("  v_mov_b32 v23, s30")
    flagtag(14)
    e("  v_mov_b32 v19, s14")
    if qmerge: e("  v_mov_b32 v20, s14")
    e("  s_mov_b32 exec_lo, 0x00ff00ff")
    e("  s_mov_b32 exec_hi, 0xff00ff00")
    e("  s_nop 4")
    for t in range(3):
        acc = 100 + 4 * t
        e(f"  ds_write_b128 v7, v[{acc}:{acc+3}] offset:{(QP2 if rq else QP) + t*256}")
    if rq:
        inc_flag(F_QG)
        stamp(2, 0)
        e("L_qcnt:")
        inc_flag_rtn(F_WQ)
        e(f"  s_cmp_lg_u32 s{S_T}, 11")
        e("  s_cbranch_scc1 L_tk_done")
        e("  v_lshlrev_b32 v112, 4, v2")
        e("  v_lshlrev_b32 v113, 3, v2")
        set_exec(48)
        def rd(p_): e(f"  ds_read_b128 v[{16+4*p_}:{19+4*p_}], v112 offset:{QP2 + 768*p_}")
        def va(a, b_):
            e(f"  v_pk_add_f32 v[{a}:{a+1}], v[{a}:{a+1}], v[{b_}:{b_+1}]")
            e(f"  v_pk_add_f32 v[{a+2}:{a+3}], v[{a+2}:{a+3}], v[{b_+2}:{b_+3}]")
        for p_ in range(14): rd(p_)
        issued = 14
        for i in range(12):
            e(f"  s_waitcnt lgkmcnt({issued - 2*(i+1)})")
            va(16 + 8*i, 20 + 8*i)
            if issued < 24:
                rd(issued); rd(issued + 1); issued += 2
            if i & 1:
                va(16 + 8*(i-1), 16 + 8*i)
                if i & 2:
                    va(16 + 8*(i-3), 16 + 8*(i-1))
                    if i == 7: va(16, 48)
        va(16, 80)
        e("  v_cvt_pk_bf16_f32 v114, v16, v17")
        e("  v_cvt_pk_bf16_f32 v115, v18, v19")
        e(f"  ds_write_b64 v113, v[114:115] offset:{QL}")
        inc_flag(F_Q)
        stamp(1)
        e("  s_branch L_tk_done")
    inc_flag_rtn(F_WQ)
    if skel:
        if sq:
            e(f"  s_cmp_lg_u32 s{S_T}, 3")
            e("  s_cbranch_scc1 L_tk_done")
            for i in range(sq):
                e(f"  buffer_store_dwordx4 v[20:23], v14, {WS}, s{4 if i != 2 else 6} offen {'sc1' if i == 2 else ssc}")
            stamp(2)
        else: stamp(2, 3)
        e("  s_branch L_tk_done")
    e(f"  s_cmp_lg_u32 s{S_T}, 3")
    e("  s_cbranch_scc1 L_tk")
    set_exec(48)
    for p in range(8):
        e(f"  ds_read_b128 v[{24+4*p}:{27+4*p}], v14 offset:{QP + 768*p}")
    for p in range(0, 8, 2):
        e(f"  s_waitcnt lgkmcnt({6-p})")
        e(f"  v_pk_add_f32 v[{24+4*p}:{25+4*p}], v[{24+4*p}:{25+4*p}], v[{28+4*p}:{29+4*p}]")
        e(f"  v_pk_add_f32 v[{26+4*p}:{27+4*p}], v[{26+4*p}:{27+4*p}], v[{30+4*p}:{31+4*p}]")
    for a, b_ in ((24, 32), (40, 48), (24, 40)):
        e(f"  v_pk_add_f32 v[{a}:{a+1}], v[{a}:{a+1}], v[{b_}:{b_+1}]")
        e(f"  v_pk_add_f32 v[{a+2}:{a+3}], v[{a+2}:{a+3}], v[{b_+2}:{b_+3}]")
    e("  v_perm_b32 v20, v24, v27, s7")
    e("  v_perm_b32 v21, v25, v27, s8")
    e("  v_perm_b32 v22, v26, v27, s9")
    if qmerge:
        e("  s_mov_b64 exec, -1")
        e(f"  buffer_store_dwordx4 v[20:23], v8, {WS}, s4 offen {N1}")
    else:
        e(f"  buffer_store_dwordx4 v[20:23], v14, {WS}, s4 offen")
        set_exec(len(slq))
        e(f"  buffer_store_dword v19, v1, {WS}, s5 offen")
    set_exec(48)
    if qd:
        assert hs >= 0x7000 + qd * 0xc00
        e("  s_add_u32 s5, s4, 0x7000")
        e("  v_mov_b32 v16, v20")
        e("  v_mov_b32 v17, v21")
        e("  v_mov_b32 v18, v22")
        for c in range(qd):
            e(f"  buffer_store_dwordx4 v[16:19], v14, {WS}, s5 offen offset:{(c & 1)*0xc00} {N2}")
            if c & 1 and c + 1 < qd: e("  s_add_u32 s5, s5, 0x1800")
    if ncopy > 1:
        e(f"  s_add_u32 s4, s4, 0x{CB:x}")
        e(f"  buffer_store_dwordx4 v[20:23], v14, {WS}, s4 offen {N2}")
    if ncopy > 2 and not qd:
        e("  s_add_u32 s4, s4, 0x2000")
        e(f"  buffer_store_dwordx4 v[20:23], v14, {WS}, s4 offen {N2}")
    e(f"  ds_write_b128 v14, v[20:23] offset:{OWNG}")
    inc_flag(F_QG)
    stamp(2)
    e("L_tk:")
    if q9:
        e("  s_cmp_ge_u32 s3, 8")
        e("  s_cselect_b32 s14, 4, 0")
        e("  s_sub_u32 s11, s3, s14")
        e("  s_cmp_ge_u32 s3, 12")
        e("  s_subb_u32 s11, s11, 0            ; taker 0..8")
        e("  s_mul_i32 s14, s11, 86")
        e("  s_lshr_b32 s14, s14, 8")
        e("  s_mul_i32 s32, s14, 3")
        e("  s_sub_u32 s11, s11, s32")
        e("  s_lshl_b32 s11, s11, 8")
    else:
        e("  s_sub_u32 s14, s3, 7")
        e("  s_max_i32 s14, s14, 0")
        e("  s_cmp_lt_u32 s3, 3")
        e("  s_cselect_b32 s14, s3, s14")
        e("  s_cselect_b32 s11, 0, 0x200")
    e("  s_mul_i32 s32, s14, 768")
    e("  s_add_u32 s32, s32, s11")
    e("  v_lshlrev_b32 v117, 4, v2         ; lane*16")
    e("  v_add_u32 v116, s32, v117")
    e("  s_add_u32 s14, s14, 1")
    e(f"  s_xor_b32 s14, s14, s{S_J}          ; producer")
    e(f"  s_lshl_b32 s15, s14, {4 if qmerge else 2}")
    e("  s_add_u32 s15, s15, s31")
    e(f"  s_add_u32 s15, s15, 0x{QF:x}")
    e("  s_mul_i32 s8, s14, 0x300")
    e("  s_add_u32 s8, s8, s11")
    e("  s_add_u32 s8, s8, s31")
    e("  s_lshl_b32 s9, s14, 10")
    e("  s_add_u32 s9, s9, s11")
    e(f"  s_lshl_b32 s34, s{S_BH}, 12")
    e(f"  s_add_u32 s34, s34, 0x{QSS:x}")
    e("  s_add_u32 s9, s9, s34")
    if not qd: flagtag(33)
    wait_flag(F_QG, 1, sleep=0)
    if dq: stamp(10, -3)
    if qd:
        assert q9
        e("  s_add_u32 s14, s8, 0x7000")
        flagtag(S_T)
        for c in range(qd):
            if c:
                e("  s_add_u32 s14, s14, 0xc00")
                if qsl: e(f"  s_sleep {qsl}")
            for i in range(4):
                e(f"  s_load_dwordx16 s[{32+16*i}:{47+16*i}], s[28:29], s14 offset:{64*i}")
            e(f"  v_mov_b32 v115, s{S_T}")
            e("  s_waitcnt lgkmcnt(0)")
            for g in range(16):
                e(f"  v_writelane_b32 v115, s{35+4*g}, {g}")
            e(f"  v_cmp_ne_u32 vcc, s{S_T}, v115")
            e("  s_cmp_eq_u64 vcc, 0")
            e("  s_cbranch_scc1 L_qb_ok")
        if dq: stamp(5, -3)
        e(f"  s_lshl_b32 s34, s{S_BH}, 12")
        e(f"  s_add_u32 s34, s34, 0x{QSS:x}")
        flagtag(33)
    for k, z in enumerate(slq):
        e(f"  s_load_dword s32, s[28:29], s15 offset:{64*k}")
        e("  s_waitcnt lgkmcnt(0)")
        e("  s_cmp_eq_u32 s32, s33")
        e("  s_cbranch_scc1 L_qb_seen")
        if z and k + 1 < len(slq): e(f"  s_sleep {z}")
    set_exec(48)
    e(f"  ds_read_b128 v[112:115], v117 offset:{OWNG}")
    e(f"  ds_write_b32 v10, v11 offset:{F_SLOW}")
    e(f"  s_lshl_b32 s14, s{S_J}, 10")
    e("  s_add_u32 s14, s14, s34")
    e("  s_waitcnt lgkmcnt(0)")
    e(f"  buffer_store_dwordx4 v[112:115], v117, {WS}, s14 offen sc1")
    e("  s_mov_b64 exec, -1")
    e("  s_mov_b32 s15, 0")
    e("L_qb_slow:")
    stamp(11)
    e(f"  s_sub_u32 s{S_BUD}, s{S_BUD}, 64")
    e("  s_cbranch_scc1 L_end")
    set_exec(16)
    e(f"  buffer_load_dwordx4 v[112:115], v117, {WS}, s8 offen sc1")
    e(f"  buffer_load_dwordx4 v[124:127], v117, {WS}, s9 offen sc1")
    e("  s_waitcnt vmcnt(0)")
    e("  v_cmp_eq_u32 vcc, s30, v127")
    for d in range(4):
        e(f"  v_cndmask_b32 v{112+d}, v{112+d}, v{124+d}, vcc")
    e("  v_cmp_ne_u32 vcc, s30, v115")
    e("  s_mov_b64 exec, -1")
    e("  s_cmp_lg_u64 vcc, 0")
    e("  s_cbranch_scc1 L_qb_slow")
    e("  s_branch L_qb_put")
    e("L_qb_seen:")
    if dq: stamp(1, -3)
    if fd: e(f"  s_sleep {fd}")
    e("L_qb_fast:")
    e("  s_mov_b32 s14, s8")
    nq = 2 if qd else ncopy
    for c in range(nq):
        if c:
            if c == 2: pass
            elif mminfo and stamps:
                e("  s_mov_b32 s26, vcc_lo")
                e("  s_lshl_b32 s27, s3, 16")
                e("  s_or_b32 s27, s27, s11")
                e("  s_or_b32 s27, s27, 0x40000000")
                put(5, 26)
            else: stamp(5)
            e(f"  s_add_u32 s14, s14, 0x{CB if c == 1 else 0x2000:x}")
            if rs[c-1]: e(f"  s_sleep {rs[c-1]}")
        for i in range(4):
            e(f"  s_load_dwordx16 s[{32+16*i}:{47+16*i}], s[28:29], s14 offset:{64*i}")
        e("  v_mov_b32 v115, s30")
        e("  s_waitcnt lgkmcnt(0)")
        for g in range(16):
            e(f"  v_writelane_b32 v115, s{35+4*g}, {g}")
        e("  v_cmp_ne_u32 vcc, s30, v115")
        e("  s_cmp_eq_u64 vcc, 0")
        if c < nq - 1: e("  s_cbranch_scc1 L_qb_ok")
        else: e("  s_cbranch_scc0 L_qb_slow")
    e("L_qb_ok:")
    for d in range(3):
        for g in range(16):
            e(f"  v_writelane_b32 v{112+d}, s{32+4*g+d}, {g}")
    e("L_qb_put:")
    set_exec(16)
    e(f"  ds_write_b128 v116, v[112:115] offset:{QG}")
    e("  s_mov_b64 exec, -1")
    if not q9:
        e("  s_cmp_lg_u32 s11, 0")
        e("  s_cbranch_scc1 L_qb_cnt")
        if dq: stamp(5, -3)
        e("  s_movk_i32 s11, 0x100")
        e("  s_add_u32 s8, s8, s11")
        e("  s_add_u32 s9, s9, s11")
        e("  v_add_u32 v116, s11, v116")
        e("  s_cmp_lg_u32 s15, 0")
        e("  s_cbranch_scc1 L_qb_fast")
        e("  s_branch L_qb_slow")
    e("L_qb_cnt:")
    if dq: stamp(6, -3)
    inc_flag_rtn(F_QG)
    e(f"  s_cmp_lg_u32 s{S_T}, {9 if q9 else 6}")
    e("  s_cbranch_scc1 L_tk_done")
    set_exec(48)
    for p in range(4):
        e(f"  ds_read_b96 v[{100+4*p}:{102+4*p}], v117 offset:{QG + 768*p}")
    e("  s_mov_b32 s14, 0x0c04000c")
    e("  s_mov_b32 s15, 0x0402010c")
    e("  v_lshrrev_b32 v13, 1, v117")
    for p in range(4):
        q = 100 + 4 * p
        e(f"  s_waitcnt lgkmcnt({3-p})")
        e(f"  v_perm_b32 v{q+3}, v{q+1}, v{q}, s14")
        e(f"  v_and_b32 v{q}, 0xffffff00, v{q}")
        e(f"  v_and_b32 v{q+1}, 0xffffff00, v{q+1}")
        e(f"  v_perm_b32 v{q+3}, v{q+2}, v{q+3}, s15")
        e(f"  v_and_b32 v{q+2}, 0xffffff00, v{q+2}")
        if p & 1:
            e(f"  v_pk_add_f32 v[{q-4}:{q-3}], v[{q-4}:{q-3}], v[{q}:{q+1}]")
            e(f"  v_pk_add_f32 v[{q-2}:{q-1}], v[{q-2}:{q-1}], v[{q+2}:{q+3}]")
    e("  v_pk_add_f32 v[100:101], v[100:101], v[108:109]")
    e("  v_pk_add_f32 v[102:103], v[102:103], v[110:111]")
    e("  v_cvt_pk_bf16_f32 v112, v100, v101")
    e("  v_cvt_pk_bf16_f32 v113, v102, v103")
    e(f"  ds_write_b64 v13, v[112:113] offset:{QL}")
    inc_flag(F_Q)
    if dq: stamp(13, -4)
    e("L_tk_done:")
    e("  s_cmp_ge_u32 s3, 4")
    e("  s_cbranch_scc1 L_v2")
    e(f"  s_cmp_eq_u32 s{S_J}, 3")
    e("  s_cbranch_scc1 L_end")
    setprio(0)
    e("  s_mov_b32 s14, s3")
    e("L_wo:")
    srd(16, 12, 7864320)
    e("  v_lshrrev_b32 v3, 4, v2           ; g")
    e("  v_and_b32 v4, 15, v2              ; n")
    e("  v_mul_u32_u24 v6, 20480, v3")
    e("  v_lshl_add_u32 v6, v4, 4, v6")
    e(f"  s_mul_i32 s40, s{S_H}, 192")
    e(f"  s_lshl_b32 s41, s{S_J}, 6")
    e("  s_add_u32 s40, s40, s41")
    e("  s_mul_i32 s40, s40, 1280")
    e("  s_lshl_b32 s41, s14, 8")
    e("  s_add_u32 s32, s40, s41")
    for i in range(1, 6): e(f"  s_add_u32 s{32+i}, s{31+i}, 3840")
    make_sel(4, 80, 96)
    e("  v_lshlrev_b32 v7, 5, v3           ; o address g*32")
    e("  v_lshlrev_b32 v14, 5, v4")
    e("  v_lshl_add_u32 v14, v3, 4, v14")
    e(f"  s_mul_i32 s40, s{S_H}, 3")
    e(f"  s_add_u32 s40, s40, s{S_J}")
    e("  s_mul_i32 s40, s40, 2560")
    e("  s_lshl_b32 s41, s14, 9")
    e("  s_add_u32 s40, s40, s41")
    e(f"  s_mul_i32 s41, s{S_B}, 0x{BSB:x}")
    e("  s_add_u32 s40, s40, s41")
    e(f"  s_add_u32 s38, s40, 0x{BS:x}")
    e("  s_mov_b32 s39, 0x07060501")
    e("  s_mov_b32 s40, 0x07060502")
    e("  s_mov_b32 s41, 0x07060503")
    e("  v_mov_b32 v111, s30")
    if bat and not skel and afm == 9:
        e(f"  s_cmp_lg_u32 s3, {fw}")
        e("  s_cbranch_scc1 L_acf1")
        if rba:
            e(f"  s_mul_i32 s44, s{S_BH}, {rba}")
            e(f"  s_add_u32 s44, s44, 0x{RBA:x}")
        else: e(f"  s_add_u32 s44, s31, 0x{AFL:x}")
        e("  s_load_dwordx16 s[48:63], s[28:29], s44")
        if awarm:
            e(f"  s_mov_b32 s45, 0x{AC:x}")
            e("  s_mov_b64 exec, 1")
            e(f"  buffer_load_dword v116, v10, {WS}, s45 offen")
            if tout: e("  global_load_dword v117, v10, s[24:25]")
            e("  s_mov_b64 exec, -1")
        e("  v_lshlrev_b32 v112, 3, v2")
        e("  s_waitcnt lgkmcnt(0)")
        for i in range(6):
            e(f"  s_xor_b32 s{48+2*i}, s{48+2*i}, s30")
        e("  s_or_b32 s48, s48, s50")
        e("  s_or_b32 s52, s52, s54")
        e("  s_or_b32 s56, s56, s58")
        e("  s_or_b32 s48, s48, s52")
        e("  s_or_b32 s48, s48, s56")
        e("  s_cbranch_scc0 L_acf_ok")
        if dacf: stamp(5, -2)
        e("L_acf:")
        e(f"  s_sub_u32 s{S_BUD}, s{S_BUD}, 64")
        e("  s_cbranch_scc1 L_end")
        set_exec(6)
        e(f"  buffer_load_dwordx2 v[114:115], v112, {WS}, s44 offen sc1")
        e("  s_waitcnt vmcnt(0)")
        e("  v_cmp_ne_u32 vcc, s30, v114")
        e("  s_mov_b64 exec, -1")
        e("  v_readlane_b32 s59, v115, 5")
        e("  s_cmp_lg_u64 vcc, 0")
        e("  s_cbranch_scc1 L_acf")
        e("L_acf_ok:")
        if dacf: stamp(9, -2)
        e("  v_mov_b32 v113, s59")
        e("  s_mov_b64 exec, 1")
        e(f"  ds_write_b32 v10, v113 offset:{F_MH}")
        e("  s_mov_b64 exec, -1")
        e("L_acf1:")
    elif bat and not skel and afm != 10:
        e(f"  s_mul_i32 s44, s{S_B}, 0x{ACB:x}")
        e(f"  s_add_u32 s44, s44, 0x{AC:x}")
        if afm:
            e(f"  s_lshl_b32 s45, s{S_H}, 8")
            e("  s_add_u32 s44, s44, s45")
            e("  s_add_u32 s44, s44, 0x10000")
            e(f"  s_cmp_lg_u32 s3, {afm-1}")
            e("  s_cbranch_scc1 L_acf0")
        e("  s_mov_b64 exec, 1")
        e(f"  buffer_load_dwordx2 v[112:113], v10, {WS}, s44 offen sc1")
        if tout: e("  global_load_dword v114, v10, s[24:25]")
        e("  s_mov_b64 exec, -1")
        e("L_acf0:")
    wait_flag(F_VI, 8)
    e("  s_waitcnt vmcnt(0)")
    if bat and not skel and afm < 9:
        if afm:
            e(f"  s_cmp_lg_u32 s3, {afm-1}")
            e("  s_cbranch_scc1 L_acf1")
        e("L_acf:")
        e(f"  v_readfirstlane_b32 s{S_T}, v112")
        e("  v_readfirstlane_b32 s47, v113")
        e(f"  s_cmp_eq_u32 s{S_T}, s30")
        e("  s_cbranch_scc1 L_acf_ok")
        e(f"  s_sub_u32 s{S_BUD}, s{S_BUD}, 64")
        e("  s_cbranch_scc1 L_end")
        e(f"  buffer_load_dwordx2 v[112:113], v10, {WS}, s44 offen sc1")
        e("  s_waitcnt vmcnt(0)")
        e("  s_branch L_acf")
        e("L_acf_ok:")
        e("  s_mov_b64 exec, 1")
        e(f"  ds_write_b32 v10, v113 offset:{F_MH}")
        e("  s_mov_b64 exec, -1")
        e("L_acf1:")
    def wo_load(st):
        rr = 16 + 4 * st
        e(f"  buffer_load_dwordx4 v[{rr}:{rr+3}], v6, {ST}, s{32+st//3} offen offset:{(st%3)*1280} {nt}")
    e("  s_mul_i32 s42, s3, 5120-256")
    e("  s_add_u32 s42, s42, s32")
    e("  s_add_u32 s42, s42, 1024")
    e("  s_add_u32 s43, s42, 3840")
    def wo_load20(i):
        if i < 4:
            e(f"  buffer_load_dwordx4 v[{112+4*i}:{115+4*i}], v6, {ST}, s{42 + i//3} offen offset:{(i%3)*1280} {nt}")
        else: wo_load(i - 4)
    paced(20, wwo, wo_load20)
    if skel:
        e("  s_waitcnt vmcnt(0)")
        stamp(8, 0)
        e("  s_branch L_end")
    e("  s_lshl_b32 s42, s3, 3")
    e("  v_add_u32 v5, s42, v7")
    e("  s_lshl_b32 s42, s3, 9")
    e("  v_add_u32 v15, s42, v14")
    e("  s_sub_u32 s43, s38, s42")
    e("  v_lshlrev_b32 v12, 4, v2          ; lane*16")
    if stamps and not dtail and not now1:
        e("  s_cmp_lg_u32 s3, 1")
        e("  s_cbranch_scc1 L_w1s")
        e("  s_waitcnt vmcnt(0)")
        stamp(1)
        e("L_w1s:")
    if bat and afm:
        wait_flag(F_MH, 1)
        e(f"  s_mov_b32 s47, s{S_T}")
    wait_flag(F_O, 1)
    setprio(3)
    e(f"  ds_read_b64 v[100:101], v5 offset:{OL}")
    e(f"  ds_read_b128 v[88:91], v7 offset:{OL}")
    e(f"  ds_read_b128 v[92:95], v7 offset:{OL+16}")
    e("  s_waitcnt lgkmcnt(2)")
    for i in range(4):
        for rr in range(4):
            e(f"  v_perm_b32 v{96+rr}, v{100+i//2}, v{100+i//2}, v{80+2*rr+(i&1)}")
        e(f"  s_waitcnt vmcnt({19-i})")
        e("  s_nop 0")
        c = "0" if i == 0 else "v[108:111]"
        e(f"  v_mfma_f32_16x16x32_bf16 v[108:111], v[96:99], v[{112+4*i}:{115+4*i}], {c}")
        e("  s_nop 3")
    e("  s_waitcnt lgkmcnt(0)")
    if bat:
        ex = ["  s_nop 0", "  s_nop 0", "  s_mov_b32 exec_hi, 0\n" + f"  ds_write_b128 v15, v[108:111] offset:{XP}\n" + "  s_mov_b64 exec, 1\n"
              + f"  ds_add_u32 v10, v11 offset:{F_X}\n" + "  s_mov_b64 exec, -1"]
        ex += ["  s_mov_b32 s14, s3"] + [x.replace("\x02", "\n") for x in bat_setup().split("\n")]
        assert len(ex) <= 16, len(ex)
        mfma_chain(16, 88, 80, 16, 104, 96, ex)
        e("  s_nop 7")
        e("L_bat:")
        if dly:
            e(f"  s_cmp_lg_u32 s{S_B}, {dly[0]}")
            e("  s_cbranch_scc1 L_nodly")
            for i in range(dly[1]): e("  s_sleep 32")
            e("L_nodly:")
        e("  v_permlane32_swap_b32 v104, v106")
        e("  v_permlane32_swap_b32 v105, v107")
        e("  s_nop 0")
        e("  v_cvt_f64_f32 v[112:113], v104")
        e("  v_cvt_f64_f32 v[114:115], v105")
        e("  v_cmp_nlt_f32 s[50:51], |v104|, s55")
        e("  v_cmp_nlt_f32 s[52:53], |v105|, s55")
        e("  v_add_f64 v[112:113], v[112:113], s[46:47]")
        e("  v_add_f64 v[114:115], v[114:115], s[46:47]")
        e("  s_or_b64 vcc, s[50:51], s[52:53]")
        e("  v_add_u32 v113, s56, v113")
        e("  v_add_u32 v115, s56, v115")
        e("  s_cbranch_scc1 L_big")
        e("L_bat2:")
        e("  v_mov_b64 v[116:117], v[112:113]")
        e("  v_mov_b64 v[118:119], v[114:115]")
        e(f"  buffer_atomic_add_x2 v[116:117], v120, {WS}, s45 offen sc0 {asc}")
        e(f"  buffer_atomic_add_x2 v[118:119], v120, {WS}, s48 offen sc0 {asc}")
        stamp(15, 3)
        dstamp(1)
        e("  s_waitcnt vmcnt(0)")
        if dtail == 1: dstamp(12) if False else None
        dstamp2 = True
        if stamps and dtail:
            e("  s_cmp_ge_u32 s14, 4")
            e("  s_cbranch_scc1 L_dt4")
            dstamp(12)
            e("L_dt4:")
        e("  v_add_co_u32 v116, vcc, v116, v112")
        e("  v_add_co_u32 v118, s[52:53], v118, v114")
        e("  v_addc_co_u32 v117, vcc, v117, v113, vcc")
        e("  s_nop 0")
        e("  v_addc_co_u32 v119, s[52:53], v119, v115, s[52:53]")
        e(f"  v_add_u32 v112, 0x{(0x20000 - (96 << 25)) & 0xffffffff:x}, v117")
        e(f"  v_add_u32 v114, 0x{(0x20000 - (96 << 25)) & 0xffffffff:x}, v119")
        e("  v_and_b32 v117, 0x3ffff, v112")
        e("  v_and_b32 v119, 0x3ffff, v114")
        e("  v_cmp_gt_u32 s[50:51], s54, v112")
        e("  v_cmp_gt_u32 s[52:53], s54, v114")
        e("  v_add_u32 v117, s57, v117")
        e("  v_add_u32 v119, s57, v119")
        e("  s_or_b64 vcc, s[50:51], s[52:53]")
        e("  s_cbranch_scc0 L_wo_end")
        e("  v_add_f64 v[116:117], v[116:117], -s[46:47]")
        e("  v_add_f64 v[118:119], v[118:119], -s[46:47]")
        e("  v_cmp_le_u32 vcc, 0x40000, v112")
        e("  s_and_b64 s[58:59], vcc, s[50:51]")
        e("  v_cmp_le_u32 vcc, 0x40000, v114")
        e("  s_and_b64 s[60:61], vcc, s[52:53]")
        e("  s_or_b64 vcc, s[58:59], s[60:61]")
        e("  s_cbranch_scc1 L_side")
        e("L_bat3:")
        e("  v_cvt_f32_f64 v116, v[116:117]")
        e("  v_cvt_f32_f64 v118, v[118:119]")
        e("  s_mov_b64 exec, s[50:51]")
        e("  v_cvt_pk_bf16_f32 v116, v116, v116")
        e(f"  buffer_store_short v116, v121, {ST}, s49 offen {osc}")
        e("  s_mov_b64 exec, s[52:53]")
        e("  v_cvt_pk_bf16_f32 v118, v118, v118")
        e(f"  buffer_store_short v118, v121, {ST}, s49 offen offset:2 {osc}")
        e("  s_mov_b64 exec, -1")
        stamp(11)
        e("  s_cmp_lg_u32 s14, 0")
        e("  s_cbranch_scc1 L_wo_end")
        e("  s_bitcmp0_b32 s50, 0")
        e("  s_cbranch_scc1 L_wo_end")
        if ep2:
            e(f"  s_add_u32 s2, s2, 0x{EPC:08x}")
            e("  s_sub_u32 s15, s30, s2")
            e("  v_mov_b32 v20, s15")
            e("  v_mov_b32 v21, s2")
        else: e("  v_mov_b32 v20, s30")
        e(f"  s_lshl_b32 s14, s{S_B}, 8")
        e("  s_mov_b64 exec, 1")
        e(f"  buffer_store_dword v20, v10, {WS}, s14 offen {NE}")
        if ep2:
            e(f"  s_add_u32 s14, s14, 0x{EPH:x}")
            e(f"  buffer_store_dword v21, v10, {WS}, s14 offen {NE}")
    elif bdir:
        ex = ["  s_nop 0", "  s_nop 0", "  s_mov_b32 exec_hi, 0\n" + f"  ds_write_b128 v15, v[108:111] offset:{XP}\n" + "  s_mov_b64 exec, 1\n"
              + f"  ds_add_u32 v10, v11 offset:{F_X}\n" + "  s_mov_b64 exec, -1"]
        mfma_chain(16, 88, 80, 16, 104, 96, ex)
        e("  s_mov_b32 exec_hi, 0")
        e("  s_waitcnt lgkmcnt(0)")
        e("  v_mov_b32 v111, s30")
        e("  s_nop 4")
        e("  v_perm_b32 v108, v104, v107, s39")
        e("  v_perm_b32 v109, v105, v107, s40")
        e("  v_perm_b32 v110, v106, v107, s41")
        e(f"  buffer_store_dwordx4 v[108:111], v14, {WS}, s38 offen sc1")
        e("  s_mov_b64 exec, -1")
        stamp(15, 3)
    else:
        ex = ["  s_nop 0", "  s_nop 0", "  s_mov_b32 exec_hi, 0\n" + f"  ds_write_b128 v15, v[108:111] offset:{XP}\n" + "  s_mov_b64 exec, -1"]
        mfma_chain(16, 88, 80, 16, 104, 96, ex)
        e("  s_mov_b32 exec_hi, 0")
        e("  s_waitcnt lgkmcnt(0)")
        e("  v_mov_b32 v111, s30")
        e("  v_mov_b32 v35, s30")
        e("  s_nop 3")
        e("  v_perm_b32 v108, v104, v107, s39")
        e("  v_perm_b32 v109, v105, v107, s40")
        e("  v_perm_b32 v110, v106, v107, s41")
        e(f"  ds_write_b128 v15, v[108:111] offset:{BL}")
        inc_flag_rtn(F_X)
        e(f"  s_cmp_lg_u32 s{S_T}, 3")
        e("  s_cbranch_scc1 L_wo_end")
        e(f"  ds_read_b128 v[36:39], v12 offset:{BL}")
        e(f"  ds_read_b128 v[40:43], v12 offset:{BL+1024}")
        e("  s_mov_b32 exec_hi, 0")
        for p in range(4):
            e(f"  ds_read_b128 v[{16+4*p}:{19+4*p}], v14 offset:{XP + 512*p}")
        e("  s_mov_b64 exec, -1")
        e("  s_waitcnt lgkmcnt(5)")
        e(f"  buffer_store_dwordx4 v[36:39], v12, {WS}, s43 offen sc1")
        e("  s_waitcnt lgkmcnt(4)")
        e(f"  buffer_store_dwordx4 v[40:43], v12, {WS}, s43 offen offset:1024 sc1")
        e("  s_mov_b32 exec_hi, 0")
        e("  s_waitcnt lgkmcnt(2)")
        e("  v_pk_add_f32 v[16:17], v[16:17], v[20:21]")
        e("  v_pk_add_f32 v[18:19], v[18:19], v[22:23]")
        e("  s_waitcnt lgkmcnt(0)")
        e("  v_pk_add_f32 v[24:25], v[24:25], v[28:29]")
        e("  v_pk_add_f32 v[26:27], v[26:27], v[30:31]")
        e("  v_pk_add_f32 v[16:17], v[16:17], v[24:25]")
        e("  v_pk_add_f32 v[18:19], v[18:19], v[26:27]")
        e("  v_perm_b32 v32, v16, v19, s39")
        e("  v_perm_b32 v33, v17, v19, s40")
        e("  v_perm_b32 v34, v18, v19, s41")
        e(f"  buffer_store_dwordx4 v[32:35], v14, {WS}, s43 offen offset:2048 sc1")
        e("  s_mov_b64 exec, -1")
        stamp(15)
    e("L_wo_end:")
    e("  s_mov_b64 exec, -1")
    stamp(8, 0)
    e("  s_branch L_end")
    if bat and not skel:
        def side_base():
            e(f"  s_mul_i32 s58, s{S_B}, 0x{SDB:x}")
            e("  s_lshl_b32 s59, s14, 10")
            e("  s_add_u32 s58, s58, s59")
            e(f"  s_add_u32 s58, s58, 0x{SD:x}")
            e("  v_lshlrev_b32 v122, 3, v2")
        e("L_big:")
        side_base()
        e(f"  s_mul_i32 s59, s{S_H}, 3")
        e(f"  s_add_u32 s59, s59, s{S_J}")
        e("  s_mul_i32 s59, s59, 5120")
        e("  s_add_u32 s58, s58, s59")
        e("  v_mov_b32 v124, v104")
        e("  v_mov_b32 v125, s30")
        e("  v_mov_b32 v126, v105")
        e("  v_mov_b32 v127, s30")
        e("  s_mov_b64 exec, s[50:51]")
        e(f"  buffer_store_dwordx2 v[124:125], v122, {WS}, s58 offen sc0 sc1")
        e("  v_mov_b32 v112, 0")
        e(f"  v_mov_b32 v113, 0x{CNT1 + BIG1:x}")
        e("  s_mov_b64 exec, s[52:53]")
        e(f"  buffer_store_dwordx2 v[126:127], v122, {WS}, s58 offen offset:512 sc0 sc1")
        e("  v_mov_b32 v114, 0")
        e(f"  v_mov_b32 v115, 0x{CNT1 + BIG1:x}")
        e("  s_mov_b64 exec, -1")
        e("  s_waitcnt vmcnt(0)")
        e("  s_branch L_bat2")
        e("L_side:")
        e("  s_mov_b64 s[62:63], s[58:59]")
        side_base()
        e("  s_movk_i32 s59, 96")
        e("L_side1:")
        e(f"  buffer_load_dwordx2 v[124:125], v122, {WS}, s58 offen sc0 sc1")
        e(f"  buffer_load_dwordx2 v[126:127], v122, {WS}, s58 offen offset:512 sc0 sc1")
        e("  s_waitcnt vmcnt(0)")
        e("  v_cmp_eq_u32 vcc, s30, v125")
        e("  v_cvt_f64_f32 v[124:125], v124")
        e("  s_and_b64 exec, vcc, s[62:63]")
        e("  v_add_f64 v[116:117], v[116:117], v[124:125]")
        e("  s_mov_b64 exec, -1")
        e("  v_cmp_eq_u32 vcc, s30, v127")
        e("  v_cvt_f64_f32 v[126:127], v126")
        e("  s_and_b64 exec, vcc, s[60:61]")
        e("  v_add_f64 v[118:119], v[118:119], v[126:127]")
        e("  s_mov_b64 exec, -1")
        e("  s_add_u32 s58, s58, 5120")
        e("  s_sub_u32 s59, s59, 1")
        e("  s_cmp_lg_u32 s59, 0")
        e("  s_cbranch_scc1 L_side1")
        e("  s_branch L_bat3")
    if fastp:
        e("L_nw:")
        post()
        e("  s_cmp_ge_u32 s3, 8")
        e("  s_cbranch_scc1 L_v")
    e("L_k:")
    e(f"  s_lshl_b32 s24, s{S_J}, 2")
    e("  s_add_u32 s24, s24, s3")
    e("  s_sub_u32 s24, s24, 4             ; piece = 4j + (w-4)")
    srd(16, 6, 50331648)
    e(f"  v_mul_u32_u24 v5, {384 if kpat else 3072}, v3")
    e("  v_lshl_add_u32 v5, v4, 4, v5")
    e("  s_mul_i32 s14, s24, 24576")
    e(f"  s_mul_i32 s15, s{S_H}, 1572864")
    e("  s_add_u32 s14, s14, s15")
    e("  s_add_u32 s7, s14, 1179648        ; K base")
    if twave == 4: touch(4)
    e("  s_barrier")
    def k_load(n):
        g, t = divmod(n, 3)
        r = 16 + 4 * n
        if n == k_hold: wait_flag(F_WQA, 4, sleep=0)
        if n == k_hold2:
            if rq:
                if rqg == 2: inc_flag(F_K1)
                if h2 == 0: wait_flag(F_QG, qgthr, sleep=0)
                if h2 == 1: wait_flag(F_RI, 8, sleep=0)
                if h2 == 2: wait_flag(F_Q, 1, sleep=0)
                if h2 == 3: wait_flag(F_WQ, qgthr, sleep=0)
            else: wait_flag(F_QG, 1, sleep=0)
        e(f"  buffer_load_dwordx4 v[{r}:{r+3}], v5, {ST}, s7 offen offset:{g*384+t*128} {nt}")
    paced(24, wk, k_load, F_QG, 1)
    inc_flag(F_KI)
    stamp(9, 7)
    get_tag()
    if skel:
        e("  s_waitcnt vmcnt(0)")
        if sp:
            inc_flag_rtn(F_P)
            if sp == 1:
                e(f"  s_cmp_lg_u32 s{S_T}, 3")
                e("  s_cbranch_scc1 L_sk1")
            e("  v_lshlrev_b32 v14, 4, v2")
            e(f"  s_add_u32 s4, s31, 0x{PD:x}")
            e(f"  buffer_store_dwordx4 v[20:23], v14, {WS}, s4 offen {ssc}")
            e("L_sk1:")
        stamp(4, 4)
        stamp(14, 7)
        e(f"  s_cmp_eq_u32 s{S_J}, 3")
        e("  s_cbranch_scc1 L_end")
        e(f"  s_cmp_lg_u32 s3, {4 if not w20 else 99}")
        e("  s_cbranch_scc1 L_end")
        e("  s_mov_b32 s14, 4")
        e("  s_branch L_wo")
    e("  v_lshlrev_b32 v14, 4, v2          ; lane*16")
    e("  v_lshlrev_b32 v7, 4, v4")
    e("  v_lshl_add_u32 v12, v3, 5, v7")
    e("  v_lshrrev_b32 v12, 1, v12")
    e("  s_lshl_b32 s14, s3, 7")
    e("  v_add_u32 v12, s14, v12")
    e(f"  s_lshl_b32 s14, s{S_J}, 10")
    e("  s_add_u32 s4, s14, s31")
    e(f"  s_add_u32 s4, s4, 0x{PD:x}")
    e(f"  s_lshl_b32 s5, s{S_BH}, 12")
    e("  s_add_u32 s5, s5, s14")
    e(f"  s_add_u32 s5, s5, 0x{PSS:x}")
    e(f"  s_lshl_b32 s7, s{S_J}, 2")
    e("  s_add_u32 s7, s7, s31")
    e(f"  s_add_u32 s7, s7, 0x{PF:x}")
    e("  v_lshlrev_b32 v15, 3, v2          ; lane*8")
    flagtag(11)
    e("  v_mov_b32 v6, s11")
    e("  v_and_b32 v5, 1, v2")
    e("  v_cmp_eq_u32 s[40:41], 1, v5")
    wait_flag(F_Q, 1, sleep=0)
    setprio(2)
    stamp(3, 4)
    for t in range(3):
        e(f"  ds_read_b128 v[{112+4*t}:{115+4*t}], v7 offset:{QL + t*128}")
    e("  s_waitcnt lgkmcnt(0)")
    sums = [2, 3, 4, 5, 124, 125, 126, 127]
    def dots(g):
        e(f"  s_waitcnt vmcnt({21-3*g})")
        d = 16 + 12 * g
        for i in range(12):
            c = "0" if i == 0 else f"v{sums[g]}"
            e(f"  v_dot2_f32_bf16 v{sums[g]}, v{d+i}, v{112+i}, {c}")
    def red_half(hf, out):
        ss = sums[4*hf:4*hf+4]
        e("  s_nop 2")
        for pat in ["quad_perm:[1,0,3,2]", "quad_perm:[2,3,0,1]", "row_half_mirror"]:
            for s_ in ss:
                e(f"  v_add_f32_dpp v{s_}, v{s_}, v{s_} {pat} row_mask:0xf bank_mask:0xf")
        for pi in range(2):
            e(f"  v_cvt_pk_bf16_f32 v{out+pi}, v{ss[2*pi]}, v{ss[2*pi+1]}")
        for pi in range(2):
            e(f"  v_lshlrev_b32 v{ss[2*pi]}, 16, v{out+pi}")
            e(f"  v_and_b32 v{ss[2*pi+1]}, 0xffff0000, v{out+pi}")
        for s_ in ss:
            e(f"  v_mul_f32 v{s_}, {SCALE}, v{s_}")
        for pi in range(2):
            e(f"  v_cvt_pk_bf16_f32 v{out+pi}, v{ss[2*pi]}, v{ss[2*pi+1]}")
    for g in range(4): dots(g)
    red_half(0, 20)
    e("  v_mov_b32 v18, s30")
    e("  v_mov_b32 v19, s30")
    for g in range(4, 8): dots(g)
    red_half(1, 22)
    e("  v_cndmask_b32 v16, v20, v22, s[40:41]")
    e("  v_cndmask_b32 v17, v21, v23, s[40:41]")
    e("  s_mov_b32 exec_lo, 0x03030303")
    e("  s_mov_b32 exec_hi, 0x03030303")
    e(f"  ds_write_b64 v12, v[16:17] offset:{PL - 512}")
    inc_flag_rtn(F_P)
    stamp(4, 4)
    e(f"  s_cmp_lg_u32 s{S_T}, 3")
    e(f"  s_cbranch_scc1 {'L_chk' if afm == 10 else 'L_end'}")
    if nred > 2:
        e(f"  s_cmp_lg_u32 s{S_J}, 3")
        e("  s_cbranch_scc1 L_pp0")
        wait_flag(F_B, nred - 2, sleep=0)
        e("L_pp0:")
    e(f"  ds_read_b64 v[16:17], v15 offset:{PL}")
    e(f"  ds_read_b32 v13, v10 offset:{F_SLOW}")
    e("  s_waitcnt lgkmcnt(1)")
    e(f"  buffer_store_dwordx4 v[16:19], v14, {WS}, s4 offen {N1}")
    set_exec(len(slp))
    e(f"  buffer_store_dword v6, v1, {WS}, s7 offen {N1}")
    e("  s_mov_b64 exec, -1")
    if ncopy > 1:
        e(f"  s_add_u32 s4, s4, 0x{CB:x}")
        e(f"  buffer_store_dwordx4 v[16:19], v14, {WS}, s4 offen {N2}")
    if ncopy > 2:
        e("  s_add_u32 s4, s4, 0x2000")
        e(f"  buffer_store_dwordx4 v[16:19], v14, {WS}, s4 offen {N2}")
    if not rq:
        e("  s_waitcnt lgkmcnt(0)")
        e(f"  v_readfirstlane_b32 s{S_T}, v13")
        e(f"  s_cmp_eq_u32 s{S_T}, 0")
        e("  s_cbranch_scc1 L_pp")
        e(f"  buffer_store_dwordx4 v[16:19], v14, {WS}, s5 offen sc1")
    e("L_pp:")
    set_flag(F_PP)
    stamp(14)
    if not rq:
        e(f"  s_cmp_eq_u32 s{S_J}, 3")
        e("  s_cbranch_scc1 L_end")
    wt = 20 if rq else 17
    setprio(3)
    e(f"  s_add_u32 s10, s31, 0x{PF:x}")
    e(f"  s_lshl_b32 s8, 1, s{S_J}")
    e("  s_mov_b64 exec, 1")
    for k, z in enumerate(slp):
        e(f"  s_load_dwordx4 s[32:35], s[28:29], s10 offset:{64*k}")
        e("  s_waitcnt lgkmcnt(0)")
        for g in range(4):
            e(f"  s_cmp_eq_u32 s{32+g}, s11")
            e(f"  s_cselect_b32 s{32+g}, {1 << g}, 0")
        e("  s_or_b32 s32, s32, s33")
        e("  s_or_b32 s34, s34, s35")
        e("  s_or_b32 s8, s8, s32")
        e("  s_or_b32 s8, s8, s34")
        e(f"  v_mov_b32 v{wt}, s8")
        e(f"  ds_write_b32 v10, v{wt} offset:{MASK}")
        e("  s_cmp_eq_u32 s8, 15")
        e("  s_cbranch_scc1 L_pw_done")
        if z and k + 1 < len(slp): e(f"  s_sleep {z}")
    e("  s_or_b32 s8, s8, 0x10000")
    e(f"  v_mov_b32 v{wt}, s8")
    e(f"  ds_write_b32 v10, v{wt} offset:{MASK}")
    e("  s_mov_b64 exec, -1")
    if rq: e(f"  buffer_store_dwordx4 v[16:19], v14, {WS}, s5 offen sc1")
    stamp(11)
    e("L_pw_done:")
    e("  s_mov_b64 exec, -1")
    stamp(10)
    if wbl:
        e(f"  s_cmp_lg_u32 s{S_J}, 0")
        e("  s_cbranch_scc1 L_end")
        e(f"  s_cmp_lt_u32 s{S_BH}, {64 - 8*wbl}")
        e("  s_cbranch_scc1 L_end")
        if wbs == 1: wait_flag(F_VI, 8, sleep=4)
        if wbs == 2: wait_flag(F_PV, 1, sleep=4)
        e("  buffer_wbl2 sc1")
        e("  s_waitcnt vmcnt(0)")
    e("  s_branch L_end")
    def scale_calc():
        for b0 in (24, 28):
            for i in range(4): e(f"  v_and_b32 v{b0+i}, 0x7fff7fff, v{b0+i}")
            e(f"  v_pk_max_u16 v{b0}, v{b0}, v{b0+1}")
            e(f"  v_pk_max_u16 v{b0+2}, v{b0+2}, v{b0+3}")
            e(f"  v_pk_max_u16 v{b0}, v{b0}, v{b0+2}")
            e(f"  v_lshrrev_b32 v{b0+1}, 16, v{b0}")
            e(f"  v_and_b32 v{b0}, 0xffff, v{b0}")
            e(f"  v_max_u32 v{b0}, v{b0}, v{b0+1}")
            e(f"  v_lshrrev_b32 v{b0}, 7, v{b0}")
        e("  v_lshl_or_b32 v24, v28, 16, v24")
        e("  s_nop 1")
        for pat in ["quad_perm:[1,0,3,2]", "quad_perm:[2,3,0,1]", "row_half_mirror", "row_mirror"]:
            e(f"  v_mov_b32_dpp v25, v24 {pat} row_mask:0xf bank_mask:0xf")
            e("  v_pk_max_u16 v24, v24, v25")
            e("  s_nop 1")
        for l in range(4): e(f"  v_readlane_b32 s{32+l}, v24, {16*l}")
        for l in range(4):
            e(f"  s_lshr_b32 s{36+l}, s{32+l}, 16")
            e(f"  s_and_b32 s{32+l}, s{32+l}, 0xffff")
        for l in range(1, 4):
            e(f"  s_max_u32 s32, s32, s{32+l}")
            e(f"  s_max_u32 s36, s36, s{36+l}")
        e("  s_add_u32 s32, s32, s36")
        e(f"  s_add_u32 s32, s32, {789 + ebias}")
        e("  s_lshl_b32 s32, s32, 20")
        e("  s_or_b32 s32, s32, 0x80000")
    if afm == 10:
        e("L_chk:")
        e(f"  s_cmp_lg_u32 s{S_T}, {chk_at}")
        e("  s_cbranch_scc1 L_end")
        e(f"  s_cmp_eq_u32 s{S_J}, 3")
        e("  s_cbranch_scc1 L_end")
        setprio(0)
        srd(32, 8, 50331648)
        srd(36, 12, 7864320)
        e(f"  s_mov_b32 s42, {50331648 - 1024}")
        e(f"  buffer_load_dwordx4 v[24:27], v14, s[32:35], s42 offen {NS}")
        e(f"  buffer_load_dwordx4 v[28:31], v14, s[36:39], 0 offen {NS}")
        e(f"  v_mul_u32_u24 v22, {ncp * 16}, v14")
        e(f"  s_and_b32 s44, s{S_H}, {ncp - 1}")
        e(f"  s_mul_i32 s45, s{S_B}, {5 * ncp}")
        e("  s_add_u32 s44, s44, s45")
        e("  s_lshl_b32 s44, s44, 8")
        e(f"  s_add_u32 s44, s44, 0x{RBA:x}")
        e("L_chk1:")
        set_exec(5)
        e(f"  buffer_load_dword v21, v22, {WS}, s44 offen sc1")
        e("  s_waitcnt vmcnt(0)")
        e("  v_cmp_ne_u32 vcc, s30, v21")
        e("  s_mov_b64 exec, -1")
        e("  s_cmp_eq_u64 vcc, 0")
        e("  s_cbranch_scc1 L_chk2")
        if dacf: stamp(5, -2)
        e(f"  s_sub_u32 s{S_BUD}, s{S_BUD}, 64")
        e("  s_cbranch_scc1 L_end")
        e(f"  s_sleep {csl}")
        e("  s_branch L_chk1")
        e("L_chk2:")
        scale_calc()
        e("  v_mov_b32 v21, s32")
        e("  s_mov_b64 exec, 1")
        e(f"  ds_write_b32 v10, v21 offset:{F_MH}")
        if dacf:
            e("  s_mov_b64 exec, -1")
            stamp(9, -2)
        e("  s_branch L_end")
    e("L_v:")
    if bat and not skel and afm == 10:
        e("  s_cmp_lg_u32 s3, 11")
        e("  s_cbranch_scc1 L_noinit")
        e(f"  s_cmp_lg_u32 s{S_J}, 3")
        e("  s_cbranch_scc1 L_noinit")
        e(f"  s_cmp_gt_u32 s{S_H}, 4")
        e("  s_cbranch_scc1 L_noinit")
        lz = {64: 2, 128: 3}[aun]
        e(f"  v_lshrrev_b32 v32, {lz}, v2")
        e(f"  v_and_b32 v33, {(1 << lz) - 1}, v2")
        e(f"  v_mul_u32_u24 v32, {als}, v32")
        e("  v_lshl_add_u32 v32, v33, 4, v32")
        for i in range(4): e(f"  v_mov_b32 v{16+i}, 0")
        e(f"  s_mul_i32 s44, s{S_B}, 5")
        e(f"  s_add_u32 s44, s44, s{S_H}")
        e(f"  s_mul_i32 s45, s44, {(1024//aun)*als}")
        e(f"  s_add_u32 s45, s45, 0x{AC + 4096:x}")
        e(f"  buffer_store_dwordx4 v[16:19], v32, {WS}, s45 offen sc0 sc1")
        def zflag():
            e("  v_lshrrev_b32 v22, 2, v2")
            e("  v_and_b32 v33, 3, v2")
            e("  v_lshlrev_b32 v22, 8, v22")
            e("  v_lshl_add_u32 v22, v33, 4, v22")
            if rq:
                e(f"  s_mul_i32 s44, s{S_B}, 5")
                e(f"  s_add_u32 s44, s44, s{S_H}")
            e(f"  s_mul_i32 s44, s44, {ncp * 256}")
            e(f"  s_add_u32 s44, s44, 0x{RBA:x}")
            get_tag()
            for i in range(4): e(f"  v_mov_b32 v{24+i}, s30")
            set_exec(4 * ncp)
            e("  s_waitcnt vmcnt(0)")
            e(f"  buffer_store_dwordx4 v[24:27], v22, {WS}, s44 offen sc0 sc1 {NR}")
            if dacf:
                e("  s_mov_b64 exec, -1")
                stamp(7)
                e("  s_waitcnt vmcnt(0)")
                stamp(8)
            e("  s_branch L_end")
        if not rq:
            e("  s_barrier")
            zflag()
        e("L_noinit:")
    if bat and not skel and afm == 9:
        e("  s_cmp_lg_u32 s3, 11")
        e("  s_cbranch_scc1 L_noinit")
        e(f"  s_cmp_lg_u32 s{S_J}, 3")
        e("  s_cbranch_scc1 L_noinit")
        e(f"  s_cmp_gt_u32 s{S_H}, 5")
        e("  s_cbranch_scc1 L_noinit")
        e(f"  s_cmp_eq_u32 s{S_H}, 5")
        e("  s_cbranch_scc1 L_sample")
        lz = {64: 2, 128: 3}[aun]
        e(f"  v_lshrrev_b32 v32, {lz}, v2")
        e(f"  v_and_b32 v33, {(1 << lz) - 1}, v2")
        e(f"  v_mul_u32_u24 v32, {als}, v32")
        e("  v_lshl_add_u32 v32, v33, 4, v32")
        for i in range(4): e(f"  v_mov_b32 v{16+i}, 0")
        e(f"  s_mul_i32 s45, s{S_B}, 5")
        e(f"  s_add_u32 s45, s45, s{S_H}")
        e(f"  s_mul_i32 s45, s45, {(1024//aun)*als}")
        e(f"  s_add_u32 s45, s45, 0x{AC + 4096:x}")
        e(f"  buffer_store_dwordx4 v[16:19], v32, {WS}, s45 offen sc0 sc1")
        e("  s_barrier")
        e("  v_mov_b32 v21, 0")
        e("  s_waitcnt vmcnt(0)")
        e("  s_branch L_ipub")
        e("L_sample:")
        e("  v_lshrrev_b32 v32, 1, v2")
        e("  v_and_b32 v33, 1, v2")
        e("  v_mul_u32_u24 v32, 1572864, v32")
        e("  v_lshl_add_u32 v32, v33, 4, v32")
        e("  v_add_u32 v32, 4095*384, v32")
        e("  v_mul_u32_u24 v33, 96*1280, v2")
        srd(32, 8, 50331648)
        srd(36, 12, 7864320)
        e(f"  buffer_load_dwordx4 v[24:27], v32, s[32:35], 0 offen {NS}")
        e(f"  buffer_load_dwordx4 v[28:31], v33, s[36:39], 0 offen {NS}")
        e("  s_barrier")
        e("  s_waitcnt vmcnt(0)")
        for b0 in (24, 28):
            for i in range(4): e(f"  v_and_b32 v{b0+i}, 0x7fff7fff, v{b0+i}")
            e(f"  v_pk_max_u16 v{b0}, v{b0}, v{b0+1}")
            e(f"  v_pk_max_u16 v{b0+2}, v{b0+2}, v{b0+3}")
            e(f"  v_pk_max_u16 v{b0}, v{b0}, v{b0+2}")
            e(f"  v_lshrrev_b32 v{b0+1}, 16, v{b0}")
            e(f"  v_and_b32 v{b0}, 0xffff, v{b0}")
            e(f"  v_max_u32 v{b0}, v{b0}, v{b0+1}")
            e(f"  v_lshrrev_b32 v{b0}, 7, v{b0}")
        e("  v_lshl_or_b32 v24, v28, 16, v24")
        e("  s_nop 1")
        for pat in ["quad_perm:[1,0,3,2]", "quad_perm:[2,3,0,1]", "row_half_mirror", "row_mirror"]:
            e(f"  v_mov_b32_dpp v25, v24 {pat} row_mask:0xf bank_mask:0xf")
            e("  v_pk_max_u16 v24, v24, v25")
            e("  s_nop 1")
        for l in range(4): e(f"  v_readlane_b32 s{32+l}, v24, {16*l}")
        for l in range(4):
            e(f"  s_lshr_b32 s{36+l}, s{32+l}, 16")
            e(f"  s_and_b32 s{32+l}, s{32+l}, 0xffff")
        for l in range(1, 4):
            e(f"  s_max_u32 s32, s32, s{32+l}")
            e(f"  s_max_u32 s36, s36, s{36+l}")
        e("  s_add_u32 s32, s32, s36")
        e(f"  s_add_u32 s32, s32, {789 + ebias}")
        e("  s_lshl_b32 s32, s32, 20")
        e("  s_or_b32 s32, s32, 0x80000")
        e("  v_mov_b32 v21, s32")
        e("L_ipub:")
        get_tag()
        e("  v_mov_b32 v20, s30")
        rs_ = rba if rba else hs
        e(f"  v_mul_u32_u24 v22, {rs_}, v2")
        e(f"  s_mul_i32 s44, s{S_B}, {32 * rs_}")
        e(f"  s_lshl_b32 s45, s{S_H}, 3")
        e("  s_add_u32 s44, s44, s45")
        e(f"  s_add_u32 s44, s44, 0x{RBA if rba else HB + AFL:x}")
        set_exec(32)
        e(f"  buffer_store_dwordx2 v[20:21], v22, {WS}, s44 offen sc0 sc1 {NR}")
        if dacf:
            e("  s_mov_b64 exec, -1")
            stamp(7)
            e("  s_waitcnt vmcnt(0)")
            stamp(8)
        e("  s_branch L_end")
        e("L_noinit:")
    e("  s_barrier")
    if twave > 4: touch(twave)
    if rq:
        e(f"  s_mul_i32 s14, s{S_J}, 20")
        e("  s_add_u32 s14, s14, s3")
        e("  s_add_u32 s14, s14, 12            ; 20(j+1) + vw")
        e(f"  s_mul_i32 s33, s{S_H}, 384")
        srd(16, 10, 7864320)
        e("  v_mul_u32_u24 v5, 12288, v3")
        e("  v_lshl_add_u32 v5, v4, 4, v5")
        for k in range(8):
            e(f"  s_add_u32 s15, s14, {8*k}")
            e("  s_sub_u32 s32, s15, 80")
            e("  s_cselect_b32 s15, s15, s32")
            e(f"  s_mul_i32 s{64+k}, s15, 98304")
            e(f"  s_add_u32 s{64+k}, s{64+k}, s33")
            e(f"  s_lshl_b32 s{72+k}, s15, 4")
        for k in range(8):
            e(f"  s_load_dwordx4 s[{32+4*k}:{35+4*k}], s[4:5], s{72+k}")
        if rqg == 1: wait_flag(F_WQA, 4, sleep=0)
        if rqg == 2: wait_flag(F_K1, 4, sleep=0)
        if rqg == 3: wait_flag(F_QG, 4, sleep=0)
        for k in range(8):
            if k == 7:
                e("  s_cmp_ge_u32 s3, 12")
                e("  s_cbranch_scc1 L_rq7")
            if k >= rqw: e(f"  s_waitcnt vmcnt({3*(rqw-1)})")
            for t in range(3):
                r = 16 + 12*k + 4*t
                e(f"  buffer_load_dwordx4 v[{r}:{r+3}], v5, {ST}, s{64+k} offen offset:{t*128} {wqr}")
        e("L_rq7:")
        inc_flag(F_RI)
        make_sel(4, 112, 120)
        e("  v_and_b32 v120, 1, v3")
        e("  v_cmp_eq_u32 vcc, 1, v120")
        e("  v_lshrrev_b32 v7, 5, v2")
        e("  v_mul_u32_u24 v7, 768, v7")
        SEL = [1, 8, 14, 15]
        for rr in range(4):
            e(f"  v_cndmask_b32 v{SEL[rr]}, v{112+2*rr}, v{113+2*rr}, vcc")
        e("  v_lshl_add_u32 v7, v4, 5, v7")
        e("  v_bfe_u32 v13, v2, 4, 1")
        e("  v_lshl_add_u32 v7, v13, 4, v7")
        e("  s_sub_u32 s14, s3, 4")
        e("  s_mul_i32 s14, s14, 1536")
        e("  v_add_u32 v7, s14, v7")
        e("  s_waitcnt lgkmcnt(0)")
        for k in range(8):
            if k == 7:
                e("  s_cmp_ge_u32 s3, 12")
                e("  s_cbranch_scc1 L_rq8")
            e("  s_mov_b32 exec_lo, 0xffff"); e("  s_mov_b32 exec_hi, 0")
            e(f"  v_mov_b32 v13, s{32+4*k}")
            e("  s_mov_b32 exec_lo, 0xffff0000")
            e(f"  v_mov_b32 v13, s{33+4*k}")
            e("  s_mov_b32 exec_lo, 0"); e("  s_mov_b32 exec_hi, 0xffff")
            e(f"  v_mov_b32 v13, s{34+4*k}")
            e("  s_mov_b32 exec_hi, 0xffff0000")
            e(f"  v_mov_b32 v13, s{35+4*k}")
            e("  s_mov_b64 exec, -1")
            for rr in range(4):
                e(f"  v_perm_b32 v{124+rr}, v13, v13, v{SEL[rr]}")
            e(f"  s_waitcnt vmcnt({max(0, 3*(6-k))})")
            e("  s_nop 0")
            for t in range(3):
                d = 16 + 12*k + 4*t
                acc = 112 + 4*t
                c = "0" if k == 0 else f"v[{acc}:{acc+3}]"
                e(f"  v_mfma_f32_16x16x32_bf16 v[{acc}:{acc+3}], v[124:127], v[{d}:{d+3}], {c}")
        e("L_rq8:")
        setprio(3)
        e("  s_mov_b32 exec_lo, 0x00ff00ff")
        e("  s_mov_b32 exec_hi, 0xff00ff00")
        e("  s_nop 7")
        for t in range(3):
            e(f"  ds_write_b128 v7, v[{112+4*t}:{115+4*t}] offset:{QP2 + t*256}")
        stamp(5, 8)
        e("  s_branch L_qcnt")
        e("L_v2:")
        setprio(0)
        e(f"  s_cmp_lg_u32 s{S_J}, 3")
        e("  s_cbranch_scc1 L_v1")
        e("  s_cmp_lg_u32 s3, 11")
        e("  s_cbranch_scc1 L_end")
        e(f"  s_cmp_gt_u32 s{S_H}, 4")
        e("  s_cbranch_scc1 L_end")
        zflag()
    e(f"  s_cmp_lg_u32 s{S_J}, 3")
    e("  s_cbranch_scc1 L_v1")
    if bat and not skel and afm < 9:
        e("  s_cmp_lg_u32 s3, 11")
        e("  s_cbranch_scc1 L_noinit")
        e(f"  s_cmp_lg_u32 s{S_H}, 0")
        e("  s_cbranch_scc1 L_end")
        get_tag()
        e(f"  s_mul_i32 s44, s{S_B}, 0x{ACB:x}")
        e(f"  s_add_u32 s44, s44, 0x{AC:x}")
        e(f"  v_mul_u32_u24 v5, {als}, v3")
        e("  v_lshl_add_u32 v5, v4, 4, v5")
        for i in range(4): e(f"  v_mov_b32 v{16+i}, 0")
        e("  v_mov_b32 v20, s30")
        e("  s_add_u32 s45, s44, 4096")
        for i in range(5):
            e(f"  buffer_store_dwordx4 v[16:19], v5, {WS}, s45 offen sc0 sc1")
            e(f"  s_add_u32 s45, s45, {8*als}")
        e("  v_lshrrev_b32 v32, 1, v2")
        e("  v_and_b32 v33, 1, v2")
        e("  v_mul_u32_u24 v32, 1572864, v32")
        e("  v_lshl_add_u32 v32, v33, 4, v32")
        e("  v_add_u32 v32, 4095*384, v32")
        e("  v_mul_u32_u24 v33, 96*1280, v2")
        srd(32, 8, 50331648)
        srd(36, 12, 7864320)
        e("  buffer_load_dwordx4 v[24:27], v32, s[32:35], 0 offen")
        e("  buffer_load_dwordx4 v[28:31], v33, s[36:39], 0 offen")
        e("  s_waitcnt vmcnt(0)")
        for b0 in (24, 28):
            for i in range(4): e(f"  v_and_b32 v{b0+i}, 0x7fff7fff, v{b0+i}")
            e(f"  v_pk_max_u16 v{b0}, v{b0}, v{b0+1}")
            e(f"  v_pk_max_u16 v{b0+2}, v{b0+2}, v{b0+3}")
            e(f"  v_pk_max_u16 v{b0}, v{b0}, v{b0+2}")
            e(f"  v_lshrrev_b32 v{b0+1}, 16, v{b0}")
            e(f"  v_and_b32 v{b0}, 0xffff, v{b0}")
            e(f"  v_max_u32 v{b0}, v{b0}, v{b0+1}")
            e(f"  v_lshrrev_b32 v{b0}, 7, v{b0}")
        e("  v_lshl_or_b32 v24, v28, 16, v24")
        e("  s_nop 1")
        for pat in ["quad_perm:[1,0,3,2]", "quad_perm:[2,3,0,1]", "row_half_mirror", "row_mirror"]:
            e(f"  v_mov_b32_dpp v25, v24 {pat} row_mask:0xf bank_mask:0xf")
            e("  v_pk_max_u16 v24, v24, v25")
            e("  s_nop 1")
        for l in range(4): e(f"  v_readlane_b32 s{32+l}, v24, {16*l}")
        for l in range(4):
            e(f"  s_lshr_b32 s{36+l}, s{32+l}, 16")
            e(f"  s_and_b32 s{32+l}, s{32+l}, 0xffff")
        for l in range(1, 4):
            e(f"  s_max_u32 s32, s32, s{32+l}")
            e(f"  s_max_u32 s36, s36, s{36+l}")
        e("  s_add_u32 s32, s32, s36")
        e(f"  s_add_u32 s32, s32, {789 + ebias}")
        e("  s_lshl_b32 s32, s32, 20")
        e("  s_or_b32 s32, s32, 0x80000")
        e("  v_mov_b32 v21, s32")
        if afm:
            e("  v_lshlrev_b32 v22, 8, v2")
            e("  s_add_u32 s44, s44, 0x10000")
            set_exec(32)
            e(f"  buffer_store_dwordx2 v[20:21], v22, {WS}, s44 offen sc0 sc1")
        else:
            e("  s_mov_b64 exec, 1")
            e(f"  buffer_store_dwordx2 v[20:21], v10, {WS}, s44 offen sc0 sc1")
        e("  s_branch L_end")
        e("L_noinit:")
    if not skel:
        if q9:
            e("  s_bitcmp0_b32 0x3700, s3")
        else: e(f"  s_cmp_ge_u32 s3, {max(10, 8 + nred)}")
        e("  s_cbranch_scc1 L_end")
        get_tag()
        if nred > 2:
            e("  s_cmp_lt_u32 s3, 10")
            e("  s_cbranch_scc1 L_v0")
            inc_flag(F_B)
            e("  s_branch L_red")
            e("L_v0:")
        setprio(3)
        e("  s_branch L_tk")
    e("  s_branch L_end")
    e("L_v1:")
    srd(16, 8, 50331648)
    e("  v_mul_u32_u24 v6, 6144, v3")
    e("  v_lshl_add_u32 v6, v4, 4, v6")
    e("  s_sub_u32 s6, s3, 8               ; vw")
    e(f"  s_mul_i32 s15, s{S_H}, 1572864")
    e("  s_mul_i32 s14, s6, 49152")
    e("  s_add_u32 s14, s14, 1179648")
    e("  s_add_u32 s14, s14, s15")
    e(f"  s_lshl_b32 s15, s{S_J}, 7")
    e("  s_add_u32 s4, s14, s15")
    e("  s_add_u32 s5, s4, 3072")
    make_sel(4, 80, 96)
    e("  v_lshrrev_b32 v14, 5, v2")
    e("  v_lshlrev_b32 v14, 8, v14")
    e("  v_lshl_add_u32 v14, v4, 5, v14")
    e("  v_bfe_u32 v15, v2, 4, 1")
    e("  v_lshl_add_u32 v14, v15, 4, v14")
    e("  s_lshl_b32 s15, s6, 9")
    e("  v_add_u32 v14, s15, v14")
    e("  s_lshl_b32 s15, s6, 3")
    e("  v_mov_b32 v1, s15                 ; (n,l) address")
    e(f"  s_mov_b32 s7, {LOG2E}")
    e("  s_lshl_b32 s14, s6, 9")
    e("  s_add_u32 s0, s14, s31")
    e(f"  s_add_u32 s0, s0, 0x{PD:x}")
    e(f"  s_lshl_b32 s1, s{S_BH}, 12")
    e("  s_add_u32 s1, s1, s14")
    e(f"  s_add_u32 s1, s1, 0x{PSS:x}")
    e("  s_lshr_b32 s10, s6, 1             ; producer")
    e("  s_and_b32 s14, s6, 1")
    e("  s_lshl_b32 s14, s14, 8")
    e("  v_lshlrev_b32 v7, 5, v3")
    e("  v_add_u32 v7, s14, v7")
    get_tag()
    if not skel and not rq:
        if q9: e("  s_bitcmp0_b32 0x3700, s3")
        else: e("  s_cmp_ge_u32 s3, 10")
        e("  s_cbranch_scc1 L_v3")
        setprio(3)
        e("  s_branch L_tk")
        e("L_v2:")
        setprio(0)
        e(f"  s_cmp_lg_u32 s{S_J}, 3")
        e("  s_cbranch_scc1 L_v3")
        if not bat:
            e(f"  s_cmp_lt_u32 s3, {8 + nred}")
            e("  s_cbranch_scc1 L_red")
        e("  s_branch L_end")
        e("L_v3:")
    if vgate == "qg": wait_flag(F_QG, 1)
    if not nogate: wait_flag(F_KI, 4)
    def v_load(ld):
        rr = 16 + 4 * ld
        e(f"  buffer_load_dwordx4 v[{rr}:{rr+3}], v6, {ST}, s{4 + ld//8} offen offset:{(ld%8)*384} {nt}")
    paced(16, wv, v_load)
    inc_flag(F_VI)
    stamp(12, 15)
    if skel:
        e("  s_waitcnt vmcnt(0)")
        stamp(13, 15)
        stamp(6, 8)
        e("  s_branch L_end")
    setprio(3)
    e(f"  s_cmp_lg_u32 s10, s{S_J}")
    e("  s_cbranch_scc1 L_vf0")
    wait_flag(F_P, 4, sleep=0)
    e(f"  ds_read_b128 v[88:91], v7 offset:{PL}")
    e(f"  ds_read_b128 v[92:95], v7 offset:{PL+16}")
    e("  s_waitcnt lgkmcnt(0)")
    e("  s_branch L_vs")
    for half in range(2):
        lb = f"L_vf{half}"
        e(f"{lb}:")
        if half == 0:
            e(f"  ds_read_b32 v13, v10 offset:{MASK}")
            e("  s_waitcnt lgkmcnt(0)")
            e(f"  v_readfirstlane_b32 s11, v13")
            e(f"  s_bitcmp1_b32 s11, s10")
            e(f"  s_cbranch_scc1 {lb}_fast")
            e(f"  s_bitcmp1_b32 s11, 16")
            e(f"  s_cbranch_scc1 {lb}_slow")
            e(f"  s_sub_u32 s{S_BUD}, s{S_BUD}, 1")
            e("  s_cbranch_scc1 L_end")
            if minsleep: e(f"  s_sleep {minsleep}")
            e(f"  s_branch {lb}")
        else:
            e(f"  s_bitcmp0_b32 s11, s10")
            e(f"  s_cbranch_scc1 {lb}_slow")
        block_fetch(lb, 112, 11)
        for r4 in range(4):
            m = 0xff << (8 * r4)
            if half == 0:
                e(f"  s_mov_b32 exec_lo, 0x{m:x}"); e("  s_mov_b32 exec_hi, 0")
            else:
                e("  s_mov_b32 exec_lo, 0"); e(f"  s_mov_b32 exec_hi, 0x{m:x}")
            for k in range(8):
                e(f"  v_mov_b32 v{88+k}, s{32 + 16*r4 + 4*(k//2) + (k&1)}")
        e("  s_mov_b64 exec, -1")
        if half == 0:
            e("  s_add_u32 s0, s0, 256")
            e("  s_add_u32 s1, s1, 256")
    e("L_vs:")
    stamp(6, 8)
    for i in range(8):
        e(f"  v_lshlrev_b32 v{112+2*i}, 16, v{88+i}")
        e(f"  v_and_b32 v{113+2*i}, 0xffff0000, v{88+i}")
    e("  v_max3_f32 v96, v112, v113, v114")
    e("  v_max3_f32 v97, v115, v116, v117")
    e("  v_max3_f32 v98, v118, v119, v120")
    e("  v_max3_f32 v99, v121, v122, v123")
    e("  v_max3_f32 v96, v96, v124, v125")
    e("  v_max3_f32 v97, v97, v126, v127")
    e("  v_max3_f32 v96, v96, v98, v99")
    e("  v_max_f32 v96, v96, v97")
    e("  s_nop 1")
    e("  v_max_f32_dpp v96, v96, v96 row_ror:8 row_mask:0xf bank_mask:0xf")
    e("  v_mov_b32 v97, v96")
    e("  s_nop 1")
    e("  v_permlane16_swap_b32 v96, v97")
    e("  s_nop 1")
    e("  v_max_f32 v96, v96, v97")
    e("  v_mov_b32 v97, v96")
    e("  s_nop 1")
    e("  v_permlane32_swap_b32 v96, v97")
    e("  s_nop 1")
    e("  v_max_f32 v96, v96, v97")
    e("  v_mul_f32 v108, s7, v96")
    e("  v_sub_f32 v108, 0, v108")
    for i in range(16):
        e(f"  v_fma_f32 v{112+i}, v{112+i}, s7, v108")
    for i in range(16):
        e(f"  v_exp_f32 v{112+i}, v{112+i}")
    for i in range(8):
        e(f"  v_cvt_pk_bf16_f32 v{88+i}, v{112+2*i}, v{113+2*i}")
    ex = [f"  v_pk_add_f32 v[{112+4*i}:{113+4*i}], v[{112+4*i}:{113+4*i}], v[{114+4*i}:{115+4*i}]" for i in range(4)]
    ex += ["  v_pk_add_f32 v[112:113], v[112:113], v[116:117]",
           "  v_pk_add_f32 v[120:121], v[120:121], v[124:125]",
           "  v_pk_add_f32 v[112:113], v[112:113], v[120:121]",
           "  v_add_f32 v109, v112, v113",
           "  v_add_f32_dpp v109, v109, v109 row_ror:8 row_mask:0xf bank_mask:0xf",
           "  v_mov_b32 v110, v109",
           "  v_permlane16_swap_b32 v109, v110",
           "  v_add_f32 v109, v109, v110",
           "  v_mov_b32 v110, v109",
           "  v_permlane32_swap_b32 v109, v110",
           "  v_add_f32 v109, v109, v110"]
    mfma_chain(16, 88, 80, 16, 104, 96, ex)
    e("  s_mov_b64 exec, 1")
    e(f"  ds_write_b64 v1, v[108:109] offset:{ML}")
    e("  s_mov_b32 exec_lo, 0x00ff00ff")
    e("  s_mov_b32 exec_hi, 0xff00ff00")
    e("  s_nop 4")
    e(f"  ds_write_b128 v14, v[104:107] offset:{OP}")
    inc_flag_rtn(F_PV)
    stamp(13, 15)
    e(f"  s_cmp_lg_u32 s{S_T}, 7")
    e("  s_cbranch_scc1 L_end")
    for i in range(4):
        e(f"  ds_read_b128 v[{32+4*i}:{35+4*i}], v10 offset:{ML+16*i}")
    for i in range(8):
        e(f"  ds_read2st64_b32 v[{16+2*i}:{17+2*i}], v12 offset0:{OP//256 + 2*i} offset1:{OP//256 + 2*i + 1}")
    e("  v_lshlrev_b32 v15, 1, v2")
    e("  s_waitcnt lgkmcnt(8)")
    e("  v_min3_f32 v48, v32, v34, v36")
    e("  v_min3_f32 v49, v38, v40, v42")
    e("  v_min3_f32 v48, v48, v44, v46")
    e("  v_min_f32 v48, v48, v49")
    for i in range(8):
        e(f"  v_sub_f32 v{32+2*i}, v48, v{32+2*i}")
    for i in range(8):
        e(f"  v_exp_f32 v{32+2*i}, v{32+2*i}")
    e("  v_mul_f32 v48, v32, v33")
    e("  v_mul_f32 v49, v34, v35")
    for i in range(2, 8):
        e(f"  v_fma_f32 v{48+(i&1)}, v{32+2*i}, v{33+2*i}, v{48+(i&1)}")
    e("  v_add_f32 v48, v48, v49")
    e("  v_rcp_f32 v48, v48")
    e("  s_waitcnt lgkmcnt(0)")
    for i in range(8):
        e(f"  v_add_f32 v{16+2*i}, v{16+2*i}, v{17+2*i}")
    e("  v_mul_f32 v50, v16, v32")
    e("  v_mul_f32 v51, v18, v34")
    for i in range(2, 8):
        e(f"  v_fma_f32 v{50+(i&1)}, v{16+2*i}, v{32+2*i}, v{50+(i&1)}")
    e("  v_add_f32 v50, v50, v51")
    e("  v_mul_f32 v50, v50, v48")
    e("  v_cvt_pk_bf16_f32 v50, v50, v50")
    e(f"  ds_write_b16 v15, v50 offset:{OL}")
    set_flag(F_O)
    stamp(7)
    if bat:
        e("  s_mov_b32 s14, 4")
        e("  v_and_b32 v14, 15, v2")
        e("  v_bfe_u32 v15, v2, 4, 1")
        e("  v_lshlrev_b32 v14, 5, v14")
        e("  v_lshl_add_u32 v14, v15, 4, v14")
        wait_flag(F_X, 1, sleep=0)
        e(f"  ds_read_b32 v13, v10 offset:{F_MH}")
        e("  s_waitcnt lgkmcnt(0)")
        e("  v_readfirstlane_b32 s47, v13")
        e(bat_setup().replace("\x02", "\n"))
        wait_flag(F_X, 4, sleep=0)
        e("  s_mov_b32 exec_hi, 0")
        for p in range(4):
            e(f"  ds_read_b128 v[{16+4*p}:{19+4*p}], v14 offset:{XP + 512*p}")
        e("  s_waitcnt lgkmcnt(2)")
        e("  v_pk_add_f32 v[16:17], v[16:17], v[20:21]")
        e("  v_pk_add_f32 v[18:19], v[18:19], v[22:23]")
        e("  s_waitcnt lgkmcnt(0)")
        e("  v_pk_add_f32 v[24:25], v[24:25], v[28:29]")
        e("  v_pk_add_f32 v[26:27], v[26:27], v[30:31]")
        e("  v_pk_add_f32 v[104:105], v[16:17], v[24:25]")
        e("  v_pk_add_f32 v[106:107], v[18:19], v[26:27]")
        e("  s_mov_b64 exec, -1")
        e("  s_nop 1")
        e("  s_branch L_bat")
    elif bdir:
        e(f"  s_mul_i32 s40, s{S_H}, 3")
        e(f"  s_add_u32 s40, s40, s{S_J}")
        e("  s_mul_i32 s40, s40, 2560")
        e(f"  s_mul_i32 s41, s{S_B}, 0x{BSB:x}")
        e("  s_add_u32 s40, s40, s41")
        e(f"  s_add_u32 s43, s40, 0x{BS:x}")
        e("  s_mov_b32 s39, 0x07060501")
        e("  s_mov_b32 s40, 0x07060502")
        e("  s_mov_b32 s41, 0x07060503")
        e("  v_lshlrev_b32 v14, 4, v2")
        e("  v_mov_b32 v35, s30")
        wait_flag(F_X, 4, sleep=0)
        e("  s_mov_b32 exec_hi, 0")
        for p in range(4):
            e(f"  ds_read_b128 v[{16+4*p}:{19+4*p}], v14 offset:{XP + 512*p}")
        e("  s_waitcnt lgkmcnt(2)")
        e("  v_pk_add_f32 v[16:17], v[16:17], v[20:21]")
        e("  v_pk_add_f32 v[18:19], v[18:19], v[22:23]")
        e("  s_waitcnt lgkmcnt(0)")
        e("  v_pk_add_f32 v[24:25], v[24:25], v[28:29]")
        e("  v_pk_add_f32 v[26:27], v[26:27], v[30:31]")
        e("  v_pk_add_f32 v[16:17], v[16:17], v[24:25]")
        e("  v_pk_add_f32 v[18:19], v[18:19], v[26:27]")
        e("  v_perm_b32 v32, v16, v19, s39")
        e("  v_perm_b32 v33, v17, v19, s40")
        e("  v_perm_b32 v34, v18, v19, s41")
        e(f"  buffer_store_dwordx4 v[32:35], v14, {WS}, s43 offen offset:2048 sc1")
        e("  s_mov_b64 exec, -1")
    e("  s_branch L_end")
    L_keep = L
    if bat: L = []; e = L.append
    e("L_red:")
    e(f"  s_cmp_ge_u32 s{S_H}, 20")
    e("  s_cbranch_scc1 L_end")
    srd(16, 24, 2560)
    e("  v_mul_u32_u24 v14, 2560, v3")
    e("  v_lshl_add_u32 v14, v4, 4, v14")
    e(f"  s_mul_i32 s14, s{S_B}, 0x{BSB:x}")
    e(f"  s_lshl_b32 s15, s{S_H}, 7")
    e("  s_add_u32 s14, s14, s15")
    e(f"  s_add_u32 s32, s14, 0x{BS:x}")
    for i in range(1, 12):
        e(f"  s_add_u32 s{32+i}, s{31+i}, 20480")
    e("  v_bfe_u32 v5, v2, 4, 1")
    e("  v_lshrrev_b32 v6, 5, v2")
    e("  v_lshl_add_u32 v5, v5, 1, v6")
    e("  v_lshl_add_u32 v5, v4, 2, v5")
    e("  v_lshlrev_b32 v5, 1, v5")
    e(f"  s_mul_i32 s14, s{S_B}, 1280")
    e(f"  s_lshl_b32 s15, s{S_H}, 6")
    e("  s_add_u32 s72, s14, s15")
    e("  s_mov_b32 s76, 0x0c04000c")
    e("  s_mov_b32 s77, 0x0402010c")
    if nred > 1:
        e("  s_cmp_eq_u32 s3, 8")
        e("  s_cbranch_scc1 L_red0")
        wait_flag(F_GATE, 1, sleep=4)
        e("  s_branch L_gate_done2")
        e("L_red0:")
    wait_flag(F_PP, 1, sleep=8)
    if touch_out:
        e(f"  buffer_load_ushort v20, v5, {ST}, s72 offen")
    e("L_gate:")
    e(f"  buffer_load_dwordx4 v[16:19], v14, {WS}, s32 offen sc1")
    e("  s_waitcnt vmcnt(0)")
    e("  v_cmp_eq_u32 vcc, s30, v19")
    e("  s_cmp_lg_u64 vcc, 0")
    e("  s_cbranch_scc1 L_gate_done")
    e(f"  s_sub_u32 s{S_BUD}, s{S_BUD}, 16")
    e("  s_cbranch_scc1 L_end")
    e(f"  s_sleep {gate_sleep}")
    e("  s_branch L_gate")
    e("L_gate_done:")
    if nred > 1:
        set_flag(F_GATE)
        e("L_gate_done2:")
        for w in range(1, nred):
            e(f"  s_cmp_lt_u32 s3, {8 + w}")
            e("  s_cbranch_scc1 L_stag")
            e(f"  s_sleep {rstag}")
        e("L_stag:")
    stamp(12)
    poll([16 + 4 * i for i in range(12)], 14, [32 + i for i in range(12)], [44 + 2 * i for i in range(12)])
    if nred > 1:
        inc_flag_rtn(F_DONE)
        e(f"  s_cmp_lg_u32 s{S_T}, 0")
        e("  s_cbranch_scc1 L_end")
    stamp(10)
    for i in range(12):
        q = 16 + 4 * i
        e(f"  v_perm_b32 v{q+3}, v{q+1}, v{q}, s76")
    for i in range(12):
        q = 16 + 4 * i
        e(f"  v_perm_b32 v{q+3}, v{q+2}, v{q+3}, s77")
    def pk(a, b_):
        e(f"  v_pk_add_f32 v[{a}:{a+1}], v[{a}:{a+1}], v[{b_}:{b_+1}]")
        e(f"  v_pk_add_f32 v[{a+2}:{a+3}], v[{a+2}:{a+3}], v[{b_+2}:{b_+3}]")
    for i in range(6): pk(16 + 8 * i, 20 + 8 * i)
    for i in range(3): pk(16 + 16 * i, 24 + 16 * i)
    pk(16, 32); pk(16, 48)
    e("  s_nop 1")
    e("  v_permlane32_swap_b32 v16, v17")
    e("  v_permlane32_swap_b32 v18, v19")
    e("  s_nop 1")
    e("  v_add_f32 v16, v16, v17")
    e("  v_add_f32 v18, v18, v19")
    e("  s_nop 1")
    e("  v_permlane16_swap_b32 v16, v18")
    e("  s_nop 1")
    e("  v_add_f32 v16, v16, v18")
    e("  s_nop 1")
    e("  v_add_f32_dpp v16, v16, v16 row_ror:8 row_mask:0xf bank_mask:0xf")
    e("  v_cvt_pk_bf16_f32 v16, v16, v16")
    e("  s_mov_b32 exec_lo, 0x00ff00ff")
    e("  s_mov_b32 exec_hi, 0x00ff00ff")
    e(f"  buffer_store_short v16, v5, {ST}, s72 offen")
    e("  s_mov_b64 exec, -1")
    stamp(11)
    if dbgt: dbgmax(0, ((24, 0), (24+128+64+3, 8)))
    e(f"  s_cmp_lg_u32 s{S_H}, 0")
    e("  s_cbranch_scc1 L_end")
    e("  v_mov_b32 v20, s30")
    e(f"  s_lshl_b32 s14, s{S_B}, 8")
    e("  s_mov_b64 exec, 1")
    e(f"  buffer_store_dword v20, v10, {WS}, s14 offen sc1")
    L = L_keep; e = L.append
    e("L_end:")
    if stamps:
        e("  s_mov_b64 exec, -1")
        e("  v_and_b32 v8, 63, v0")
        e("  v_lshlrev_b32 v8, 2, v8")
        e("  v_cmp_ne_u32 vcc, 0, v9")
        if ep2:
            e(f"  s_lshr_b32 s31, s{S_BH}, 3")
            e("  s_lshl_b32 s31, s31, 2")
            e(f"  s_or_b32 s31, s31, s{S_J}")
            e("  s_lshl_b32 s31, s31, 3")
            e(f"  s_and_b32 s15, s{S_BH}, 7")
            e("  s_or_b32 s31, s31, s15")
            e("  s_lshl_b32 s31, s31, 7")
        else: e("  s_lshl_b32 s31, s2, 7")
        e("  s_add_u32 s31, s31, 0x8000000")
        e("  s_mov_b64 exec, vcc")
        e("  s_cbranch_execz L_end0")
        e(f"  buffer_store_dword v9, v8, {WS}, s31 offen")
    e("L_end0:")
    e("  s_endpgm")
    e('.section .rodata,"a"')
    e(".p2align 6")
    e(f".amdhsa_kernel {KN}_kernel")
    nv = 128
    e(f"  .amdhsa_next_free_vgpr {nv}")
    e("  .amdhsa_next_free_sgpr 102")
    e(f"  .amdhsa_accum_offset {nv}")
    e("  .amdhsa_group_segment_fixed_size 0")
    e("  .amdhsa_kernarg_size 104")
    e("  .amdhsa_user_sgpr_count 2")
    e("  .amdhsa_user_sgpr_kernarg_segment_ptr 1")
    e("  .amdhsa_system_sgpr_workgroup_id_x 1")
    e(".end_amdhsa_kernel")
    return "\n".join(L) + "\n"

if __name__ == "__main__":
    W = "work/"
    import json
    variants = json.loads(sys.argv[1]) if len(sys.argv) > 1 else {"v10": {}}
    for nm, kw in variants.items():
        open(W + nm + ".s", "w").write(gen(**kw))
        open(W + nm + "_st.s", "w").write(gen(stamps=True, **kw))
```
